```python
import torch

def _softmax(x, axis=-1):
    return torch.softmax(x, dim=axis)
def _gelu(x):
    return torch.nn.functional.gelu(x, approximate="tanh")
def _silu(x):
    return torch.nn.functional.silu(x)
def _sigmoid(x):
    return torch.sigmoid(x)
def _layernorm(x, axis=-1, eps=1e-5):
    m = x.mean(dim=axis, keepdim=True)
    v = x.var(dim=axis, keepdim=True, unbiased=False)
    return (x - m) / torch.sqrt(v + eps)
def _scatter_add(tgt, idx, src, axis=0):
    return tgt.clone().index_add_(axis, idx, src)
def _segment_sum(src, seg, n):
    out = torch.zeros((n,) + src.shape[1:], dtype=src.dtype)
    return out.index_add_(0, seg, src)
def _pad(x, pw):
    flat = tuple(v for pair in reversed(pw) for v in pair)
    return torch.nn.functional.pad(x, flat)

kernel_name = 'parallel_sum__sliding_local_dilated__mixer_s_mlp__prompt'

def setup_inputs():

    _w = (lambda a: (lambda t: t.to(torch.bfloat16) if t.is_floating_point() else t)(torch.as_tensor(a)))
    def _A_setup():
        B, S, D = 1, 2048, 512
        return {
            "x": _w((lambda *s: torch.randn(*s, dtype=torch.bfloat16) * 0.05)(B, S, D)),
            "wqkv": _w((lambda *s: torch.randn(*s, dtype=torch.bfloat16) * 0.05)(D, 3 * D)),
            "wo": _w((lambda *s: torch.randn(*s, dtype=torch.bfloat16) * 0.05)(D, D)),
        }
    _A_in = _A_setup()

    def _B_setup():
        B, S, D, F = 1, 2048, 512, 1792
        return {
            "x":  _w((lambda *s: torch.randn(*s, dtype=torch.bfloat16) * 0.05)(B, S, D)),
            "w1": _w((lambda *s: torch.randn(*s, dtype=torch.bfloat16) * 0.8)(D, D) * (D ** -0.5)),
            "w2": _w((lambda *s: torch.randn(*s, dtype=torch.bfloat16) * 0.8)(D, D) * (D ** -0.5)),
            "w3": _w((lambda *s: torch.randn(*s, dtype=torch.bfloat16) * 0.8)(D, F) * (D ** -0.5)),
            "w4": _w((lambda *s: torch.randn(*s, dtype=torch.bfloat16) * 0.8)(F, D) * (F ** -0.5)),
        }
    _B_in = _B_setup()

    return {
        "A_x": _A_in["x"],
        "A_wqkv": _A_in["wqkv"],
        "A_wo": _A_in["wo"],
        "B_x": _B_in["x"],
        "B_w1": _B_in["w1"],
        "B_w2": _B_in["w2"],
        "B_w3": _B_in["w3"],
        "B_w4": _B_in["w4"],
    }

def reference(A_x, A_wqkv, A_wo, B_x, B_w1, B_w2, B_w3, B_w4):
    def _A_ref(x, wqkv, wo):
        B, S, D = x.shape
        H = 32; Dh = D // H
        W, dil = 8, 2
        qkv = (lambda x, *d: x.permute(*d))((x @ wqkv).reshape(B, S, 3, H, Dh), 2, 0, 3, 1, 4)
        q, k, v = qkv[0], qkv[1], qkv[2]
        scale = Dh ** -0.5
        pos = torch.arange(S)
        off = torch.arange(W) * dil
        idx = pos[:, None] - off[None, :]
        mask = idx >= 0
        idx_c = torch.where(mask, idx, 0).reshape(-1)
        kg = k[:, :, idx_c, :].reshape(B, H, S, W, Dh)
        vg = v[:, :, idx_c, :].reshape(B, H, S, W, Dh)
        logits = torch.einsum("bhsd,bhswd->bhsw", q, kg) * scale
        logits = torch.where(mask[None, None, :, :], logits, -1e9)
        attn = _softmax(logits, axis=-1)
        o = torch.einsum("bhsw,bhswd->bhsd", attn, vg)
        return (lambda x, *d: x.permute(*d))(o, 0, 2, 1, 3).reshape(B, S, D) @ wo

    def _B_ref(x, w1, w2, w3, w4):
        B, S, D = x.shape
        h = _gelu(_layernorm(x, axis=-1) @ w1)
        c = D // 4
        g0 = _pad(h[:, :, 0*c:1*c], ((0, 0), (1, 0), (0, 0)))[:, :S, :]
        g1 = _pad(h[:, :, 1*c:2*c], ((0, 0), (0, 1), (0, 0)))[:, 1:, :]
        g2 = _pad(h[:, :, 2*c:3*c], ((0, 0), (2, 0), (0, 0)))[:, :S, :]
        g3 = _pad(h[:, :, 3*c:   ], ((0, 0), (0, 2), (0, 0)))[:, 2:, :]
        hs = torch.concatenate([g0, g1, g2, g3], axis=-1) @ w2
        x1 = x + hs
        h2 = _gelu(_layernorm(x1, axis=-1) @ w3) @ w4
        return x1 + h2

    x = A_x
    xn = _layernorm(x, axis=-1)
    return x + _A_ref(xn, A_wqkv, A_wo) + _B_ref(xn, B_w1, B_w2, B_w3, B_w4)
```

```python
import re


class R:
    def __init__(self, kind, base, n=1):
        self.kind, self.base, self.n = kind, base, n

    def __getitem__(self, i):
        if isinstance(i, slice):
            st = i.start or 0
            en = self.n if i.stop is None else i.stop
            assert 0 <= st < en <= self.n, (st, en, self.n)
            return R(self.kind, self.base + st, en - st)
        assert 0 <= i < self.n, (i, self.n)
        return R(self.kind, self.base + i, 1)

    def sub(self, st, n):
        return self[st:st + n]

    def __str__(self):
        if self.n == 1:
            return f"{self.kind}{self.base}"
        return f"{self.kind}[{self.base}:{self.base + self.n - 1}]"

    __repr__ = __str__

    def regs(self):
        return [(self.kind, self.base + i) for i in range(self.n)]


class Pool:
    def __init__(self, kind, lo, hi):
        self.kind, self.lo, self.hi = kind, lo, hi
        self.used = {}
        self.high = lo

    def alloc(self, n, name="", align=None):
        if align is None:
            align = 1 if n == 1 else (2 if n < 4 else 4)
        b = (self.lo + align - 1) // align * align
        while b + n <= self.hi:
            if all((b + i) not in self.used for i in range(n)):
                for i in range(n):
                    self.used[b + i] = name
                self.high = max(self.high, b + n)
                return R(self.kind, b, n)
            b += align
        raise RuntimeError(f"out of {self.kind} regs for {name} ({n}); used={len(self.used)}")

    def free(self, *rs):
        for r in rs:
            if isinstance(r, (list, tuple)):
                self.free(*r)
                continue
            for i in range(r.n):
                del self.used[r.base + i]


_REG = re.compile(r"^(-?)(?:abs\()?([vas])(\d+|\[(\d+):(\d+)\])\)?$")
TRANS = ("v_exp_f32", "v_log_f32", "v_rcp_f32", "v_rsq_f32", "v_sqrt_f32", "v_sin_f32", "v_cos_f32")


def parse_operand(tok):
    tok = tok.strip()
    if tok == "vcc":
        return [("s", 106), ("s", 107)]
    if tok == "exec":
        return [("s", 126), ("s", 127)]
    if tok == "m0":
        return [("s", 124)]
    m = _REG.match(tok)
    if not m:
        return []
    k = m.group(2)
    if m.group(4) is not None:
        return [(k, i) for i in range(int(m.group(4)), int(m.group(5)) + 1)]
    return [(k, int(m.group(3)))]


class Ins:
    def __init__(self, text):
        self.text = text
        t = text.split(";")[0].strip()
        self.label = t.endswith(":")
        self.directive = t.startswith(".")
        self.op = "" if (self.label or self.directive or not t) else t.split()[0]
        self.defs, self.uses = set(), set()
        self.cls = "other"
        self.passes = 0
        self.srcC = set()
        self.srcAB = set()
        self.stdata = set()
        self.block = None
        if not self.op:
            return
        rest = t[len(self.op):].strip()
        toks, depth, cur = [], 0, ""
        for ch in rest:
            if ch == "[" or ch == "(":
                depth += 1
            if ch == "]" or ch == ")":
                depth -= 1
            if ch == "," and depth == 0:
                toks.append(cur.strip())
                cur = ""
            else:
                cur += ch
        if cur.strip():
            toks.append(cur.strip())
        mods = ""
        if toks:
            last = toks[-1].split(None, 1)
            toks[-1] = last[0]
            mods = last[1] if len(last) > 1 else ""
        self.mods = mods
        ops = [parse_operand(x) for x in toks]
        op = self.op
        base = re.sub(r"_(e32|e64|dpp|sdwa)$", "", op)
        self.base = base
        self.dpp = op.endswith("_dpp") or "row_" in mods or "quad_perm" in mods
        if op.startswith("v_mfma"):
            self.cls = "mfma"
            self.passes = 8 if "32x32" in op else 4
            self.defs = set(ops[0])
            self.srcAB = set(ops[1]) | set(ops[2])
            self.srcC = set(ops[3])
            self.uses = self.srcAB | self.srcC
        elif op.startswith("v_"):
            self.cls = "valu"
            if base.startswith("v_cmp"):
                self.defs = set(ops[0])
                self.uses = set().union(*ops[1:])
            elif base in ("v_permlane16_swap_b32", "v_permlane32_swap_b32", "v_swap_b32"):
                self.defs = set(ops[0]) | set(ops[1])
                self.uses = set(self.defs)
            elif base in ("v_add_co_u32", "v_sub_co_u32", "v_addc_co_u32"):
                self.defs = set(ops[0]) | set(ops[1])
                self.uses = set().union(*ops[2:])
            else:
                self.defs = set(ops[0])
                self.uses = set().union(*ops[1:]) if len(ops) > 1 else set()
                if base in ("v_fmac_f32", "v_dot2c_f32_bf16", "v_writelane_b32") or self.dpp:
                    self.uses |= set(ops[0])
            self.trans = base in TRANS
            self.dot = base.startswith("v_dot")
        elif op.startswith("ds_"):
            self.cls = "ds"
            if base.startswith("ds_read") or base.startswith("ds_bpermute") or base.startswith("ds_swizzle"):
                self.defs = set(ops[0])
                self.uses = set().union(*ops[1:])
            else:
                self.uses = set().union(*ops)
        elif op.startswith("buffer_") or op.startswith("global_"):
            self.cls = "vmem"
            self.lds = " lds" in (" " + mods) or "load_lds" in op
            if op in ("buffer_wbl2", "buffer_inv"):
                pass
            elif "load" in op and self.lds:
                self.uses = set().union(*ops) | {("s", 124)}
            elif "load" in op:
                self.defs = set(ops[0])
                self.uses = set().union(*ops[1:])
            else:
                self.uses = set().union(*ops)
                data = ops[0] if op.startswith("buffer_") else ops[1]
                if len(data) >= 3:
                    self.stdata = set(data)
                if "atomic" in op and "sc0" in mods:
                    self.defs = set(ops[0])
        elif op.startswith("s_"):
            self.cls = "salu"
            if op.startswith("s_load") or op.startswith("s_memtime") or op.startswith("s_memrealtime"):
                self.cls = "smem"
                self.defs = set(ops[0])
                self.uses = set().union(*ops[1:]) if len(ops) > 1 else set()
            elif op.startswith("s_cmp") or op.startswith("s_cbranch") or op.startswith("s_bitcmp") or \
                    op in ("s_branch", "s_barrier", "s_waitcnt", "s_nop", "s_endpgm", "s_sleep", "s_setprio", "s_setpc_b64"):
                self.uses = set().union(*ops) if ops else set()
            else:
                self.defs = set(ops[0]) if ops else set()
                self.uses = set().union(*ops[1:]) if len(ops) > 1 else set()
                if "saveexec" in op:
                    self.defs |= {("s", 126), ("s", 127)}

    def states(self):
        if self.op == "s_nop":
            return int(self.text.split(";")[0].split()[1], 0) + 1
        return 1 if self.op else 0


def vec(rs):
    return {r for r in rs if r[0] in "va"}


def sca(rs):
    return {r for r in rs if r[0] == "s"}


def required_gap(p, c):
    need = 0
    if p.cls == "valu":
        pv, ps = vec(p.defs), sca(p.defs)
        if c.cls == "mfma" and pv & c.uses:
            need = max(need, 3 if p.dot else 2)
        if c.cls == "valu":
            if p.trans and not c.trans and pv & c.uses:
                need = max(need, 1)
            if p.trans and c.trans and pv & c.uses:
                need = max(need, 1)
            if c.dpp and pv & c.uses:
                need = max(need, 2)
            if c.base.startswith("v_permlane") and pv & c.uses:
                need = max(need, 2)
            if c.base in ("v_readfirstlane_b32", "v_readlane_b32") and pv & c.uses:
                need = max(need, 1)
            if ps & c.uses:
                need = max(need, 4 if c.base in ("v_readlane_b32", "v_writelane_b32") else 2)
            if p.dot and (pv & (c.uses | c.defs)):
                same_acc = c.base == p.base and c.defs == p.defs
                if not same_acc:
                    need = max(need, 3)
            if ("sdwa" in p.op or "op_sel:" in p.mods and not p.base.startswith("v_pk")) and pv & c.uses:
                need = max(need, 1)
        if p.dot and c.cls in ("ds", "vmem") and pv & c.uses:
            need = max(need, 3)
        if p.trans and c.cls in ("ds", "vmem") and pv & c.uses:
            need = max(need, 1)
        if c.cls == "vmem" and ps & c.uses:
            need = max(need, 5)
        if c.cls in ("salu", "smem") and ps & c.uses:
            need = max(need, 4)
    if p.cls == "mfma":
        long_ = 12 if p.passes == 8 else 8
        if c.cls == "mfma":
            if p.defs & c.srcAB:
                need = max(need, long_)
            if p.defs & c.srcC:
                if not (c.srcC == p.defs and c.passes == p.passes):
                    need = max(need, 10 if p.passes == 8 else 6)
            elif p.defs & c.defs:
                need = max(need, 10 if p.passes == 8 else 6)
        elif c.cls in ("valu", "ds", "vmem"):
            if p.defs & (c.uses | c.defs):
                need = max(need, long_)
            if c.cls == "valu" and (p.srcC & c.defs):
                need = max(need, 7 if p.passes == 8 else 3)
    if p.cls == "salu" and ("s", 124) in p.defs and c.cls == "vmem" and getattr(c, "lds", False):
        need = max(need, 1)
    if p.cls == "vmem" and p.stdata and (p.stdata & c.defs):
        need = max(need, 2 if c.cls in ("valu", "mfma") else 1)
    return need


class Asm:
    def __init__(self):
        self.ins = []
        self.v = Pool("v", 1, 256)
        self.a = Pool("a", 0, 256)
        self.s = Pool("s", 3, 100)
        self.vm_issued = 0
        self.vm_done = 0
        self.lg_issued = 0
        self.lg_done = 0
        self.pend = {}
        self.nlabel = 0
        self.autowaits = 0
        self.cur_block = None
        self.nblock = 0

    def cond_begin(self):
        self.nblock += 1
        self.cur_block = self.nblock
        self._blk_start = len(self.ins)

    def cond_end(self):
        for i in self.ins[self._blk_start:]:
            i.block = self.cur_block
        self.cur_block = None

    def raw(self, text):
        self.ins.append(Ins(text))

    def label(self, name):
        self.raw(f"{name}:")

    def newlabel(self, stem="L"):
        self.nlabel += 1
        return f"{stem}_{self.nlabel}"

    def comment(self, t):
        self.raw(f"; {t}")

    def __call__(self, text, count=True):
        i = Ins(text)
        needvm = needlg = 0
        for r in (i.uses | i.defs):
            p = self.pend.get(r)
            if p:
                if p[0] == "vm" and p[1] > self.vm_done:
                    needvm = max(needvm, p[1])
                if p[0] == "lg" and p[1] > self.lg_done:
                    needlg = max(needlg, p[1])
        if needvm or needlg:
            self.autowaits += 1
            self.wait(vm=needvm or None, lg=needlg or None)
        self.ins.append(i)
        tok = None
        if i.cls == "vmem" and count:
            self.vm_issued += 1
            tok = ("vm", self.vm_issued)
            for r in i.defs:
                self.pend[r] = tok
        elif i.cls == "vmem":
            assert not i.defs, "uncounted VMEM op must not define registers"
        elif i.cls == "ds":
            self.lg_issued += 1
            tok = ("lg", self.lg_issued)
            for r in i.defs:
                self.pend[r] = tok
        return tok

    def wait(self, vm=None, lg=None):
        parts = []
        if isinstance(vm, tuple):
            vm = vm[1]
        if isinstance(lg, tuple):
            lg = lg[1]
        if vm is not None and vm > self.vm_done:
            n = min(self.vm_issued - vm, 63)
            parts.append(f"vmcnt({n})")
            self.vm_done = self.vm_issued - n
        if lg is not None and lg > self.lg_done:
            n = min(self.lg_issued - lg, 15)
            parts.append(f"lgkmcnt({n})")
            self.lg_done = self.lg_issued - n
        if parts:
            self.ins.append(Ins("s_waitcnt " + " ".join(parts)))

    def wait_all(self, vm=True, lg=True, force=False):
        parts = []
        if vm and (force or self.vm_done < self.vm_issued):
            parts.append("vmcnt(0)")
            self.vm_done = self.vm_issued
        if lg and (force or self.lg_done < self.lg_issued):
            parts.append("lgkmcnt(0)")
            self.lg_done = self.lg_issued
        if parts:
            self.ins.append(Ins("s_waitcnt " + " ".join(parts)))

    def vmtok(self):
        return ("vm", self.vm_issued)

    def lgtok(self):
        return ("lg", self.lg_issued)

    def pad_hazards(self):
        out = []
        nops = 0
        for c in self.ins:
            if c.op:
                need = 0
                dist = 0
                for p in reversed(out):
                    if dist >= 20:
                        break
                    if p.op:
                        g = required_gap(p, c)
                        if g > dist:
                            need = max(need, g - dist)
                        if p.block is None or p.block == c.block:
                            dist += p.states()
                while need > 0:
                    k = min(need, 16)
                    n_ = Ins(f"s_nop {k - 1}")
                    n_.block = c.block
                    out.append(n_)
                    nops += 1
                    need -= k
            out.append(c)
        self.ins = out
        return nops

    def text(self):
        lines = []
        for i in self.ins:
            if i.label or i.directive:
                lines.append(i.text)
            else:
                lines.append("    " + i.text)
        return "\n".join(lines)
```

```python
import sys, struct
from collections import deque
from asmlib import *

KNAME = "parallel_sum__sliding_local_dilated__mixer_s_mlp__prompt_kernel"
MB = 1 << 20
WS_H, WS_O, WS_X1, WS_H2, WS_ST, WS_FL, WS_TS, WS_SZ = 0, 2 * MB, 4 * MB, 6 * MB, 13 * MB, 13 * MB + 512 * 1024, 14 * MB, 15 * MB
FL_H, FL_O, FL_X1, FL_H2 = 0, 256, 512, 768
MR, MH, MEAN, RSTD, CS3, STX = 0, 768, 1536, 1920, 2304, 3072
XB, XR = 8192, 20480
RING = XB + 4 * XR
QS = 24576
L = [8192 + 16384 * i for i in range(9)]
LDS_BYTES = 163840
OOB = 0x40000000
EPS = 1e-5
LOG2E = 1.4426950408889634
C0 = -2.0 * 0.7978845608028654 * LOG2E
C1 = C0 * 0.044715


def f2u(x):
    return "0x%08x" % struct.unpack("<I", struct.pack("<f", x))[0]


def build(opt):
    A = Asm()
    V, AG, S = A.v, A.a, A.s
    stamps = []

    def stamp(name):
        if not opt.get("stamps"):
            return
        A.raw(f"s_memtime {sTS}")
        A.raw("s_waitcnt lgkmcnt(0)")
        A.lg_done = A.lg_issued
        A(f"v_writelane_b32 {vTS}, {sTS[0]}, {len(stamps)}")
        stamps.append(name)

    def weave(main, side, k):
        side = deque(side)
        for m in main:
            A(m)
            for _ in range(k):
                if side:
                    it = side.popleft()
                    it() if callable(it) else A(it)
        while side:
            it = side.popleft()
            it() if callable(it) else A(it)

    def barrier(vm=None):
        A.wait(vm=vm, lg=A.lg_issued)
        A("s_barrier")

    sP = S.alloc(16, "ptrs", 4)
    sQ = S.alloc(4, "out_dbg", 4)
    sWp = S.alloc(2, "ws")
    srd = {n: S.alloc(4, "srd_" + n, 4) for n in ("x", "qkv", "wo", "w1", "w2", "w3", "w4", "out", "ws", "dbg")}
    sRB, sJ, sA, sCL, sLI, sW, sKH, sMH, sTILE = [S.alloc(1, n) for n in "rb j a cl li w kh mh tile".split()]
    sT0, sT1, sT2, sT3, sTO = [S.alloc(1, n) for n in "t0 t1 t2 t3 timeout".split()]
    sFLB = S.alloc(1, "flagbase")
    sSO = S.alloc(1, "soff")
    sM0W = S.alloc(1, "w*4096")
    sXCC = S.alloc(1, "xcc")
    sC = S.alloc(2, "c0c1", 2)
    sTS = S.alloc(2, "ts", 2)
    s64 = S.alloc(2, "tmp64", 2)

    A("s_cmp_ge_u32 s2, 256")
    A("s_cbranch_scc1 L_END")
    A(f"s_load_dwordx16 {sP}, s[0:1], 0")
    A(f"s_load_dwordx4 {sQ}, s[0:1], 64")
    A(f"s_load_dwordx2 {sWp}, s[0:1], 80")
    vTS = V.alloc(1, "ts")
    if opt.get("stamps"):
        A(f"v_mov_b32 {vTS}, 0")
    vL, vM16, vG, vL16, vT0, vT1, vT2, vT3 = [V.alloc(1, n) for n in "l m16 g l16 t0 t1 t2 t3".split()]
    A(f"v_lshrrev_b32 {vT0}, 6, v0")
    A(f"v_and_b32 {vL}, 63, v0")
    A(f"v_readfirstlane_b32 {sW}, {vT0}")
    A(f"s_lshr_b32 {sT0}, s2, 3")
    A(f"s_and_b32 {sT1}, s2, 7")
    A(f"s_lshr_b32 {sA}, {sT0}, 3")
    A(f"s_and_b32 {sJ}, {sT0}, 7")
    A(f"s_lshl_b32 {sRB}, {sT1}, 2")
    A(f"s_add_u32 {sRB}, {sRB}, {sA}")
    A(f"s_lshr_b32 {sCL}, {sRB}, 1")
    A(f"s_and_b32 {sLI}, {sT0}, 15")
    A(f"v_and_b32 {vM16}, 15, {vL}")
    A(f"v_lshrrev_b32 {vG}, 4, {vL}")
    A(f"v_lshlrev_b32 {vL16}, 4, {vL}")
    vXD = [V.alloc(1, f"xd{i}") for i in range(5)]
    A(f"s_mul_i32 {sT2}, {sW}, 20")
    A(f"s_lshl_b32 {sT3}, {sRB}, 6")
    A(f"s_sub_u32 {sT3}, {sT3}, 14")
    A(f"v_add_u32 {vT0}, {sT2}, {vG}")
    for i in range(5):
        if i:
            A(f"v_add_u32 {vT0}, 4, {vT0}")
        A(f"v_and_b32 {vT1}, 15, {vT0}")
        A(f"v_xor_b32 {vT1}, {vT1}, {vM16}")
        A(f"v_add_u32 {vT2}, {sT3}, {vT0}")
        A(f"v_lshlrev_b32 {vT2}, 10, {vT2}")
        A(f"v_lshl_add_u32 {vXD[i]}, {vT1}, 4, {vT2}")
    A.raw("s_waitcnt lgkmcnt(0)")
    stamp("start")

    def mk_srd(name, lo, nbytes):
        d = srd[name]
        A(f"s_mov_b32 {d[0]}, {lo[0]}")
        A(f"s_mov_b32 {d[1]}, {lo[1]}")
        A(f"s_mov_b32 {d[2]}, {nbytes}")
        A(f"s_mov_b32 {d[3]}, 0x20000")

    mk_srd("x", sP[0:2], 2048 * 1024)
    mk_srd("ws", sWp, WS_SZ)
    mk_srd("dbg", sQ[2:4], 256)
    vL0 = V.alloc(1, "lane0off")
    vOne = V.alloc(1, "one")
    A(f"v_min_u32 {vL0}, 1, {vL}")
    A(f"v_lshlrev_b32 {vL0}, 30, {vL0}")
    A(f"v_mov_b32 {vOne}, 1")
    A(f"s_lshl_b32 {sFLB}, {sCL}, 11")
    A(f"s_add_u32 {sFLB}, {sFLB}, {WS_FL}")
    A(f"s_getreg_b32 {sXCC}, hwreg(HW_REG_XCC_ID)")
    A(f"s_and_b32 {sXCC}, {sXCC}, 7")
    A(f"s_mov_b32 {sTO}, {opt.get('timeout', 200000)}")
    vZ4 = V.alloc(4, "zero4")
    vArr = V.alloc(2, "arr")
    for i in range(4):
        A(f"v_mov_b32 {vZ4[i]}, 0")
    A(f"s_lshl_b32 {sT0}, {sXCC}, 3")
    A(f"s_lshl_b64 {s64}, 1, {sT0}")
    A(f"v_mov_b32 {vArr[0]}, {s64[0]}")
    A(f"v_mov_b32 {vArr[1]}, {s64[1]}")
    sARO = S.alloc(1, "arr_off")
    A(f"s_lshl_b32 {sARO}, {sCL}, 4")
    l_nw0, l_lead = A.newlabel("NW0"), A.newlabel("LEAD")
    A(f"s_cmp_lg_u32 {sW}, 0")
    A(f"s_cbranch_scc1 {l_nw0}")
    A.cond_begin()
    A(f"s_cmp_eq_u32 {sLI}, 0")
    A(f"s_cbranch_scc1 {l_lead}")
    A(f"buffer_atomic_add_x2 {vArr}, {vL0}, {srd['dbg']}, {sARO} offen sc1", count=False)
    A(f"s_branch {l_nw0}")
    A.label(l_lead)
    A(f"buffer_store_dwordx4 {vZ4}, {vL16}, {srd['ws']}, {sFLB} offen sc1", count=False)
    A(f"buffer_store_dwordx4 {vZ4}, {vL16}, {srd['ws']}, {sFLB} offen offset:1024 sc1", count=False)
    A.cond_end()
    A.label(l_nw0)

    sXreg = [S.alloc(1, f"xreg{n}") for n in range(4)]
    xtok = []
    A(f"s_mul_i32 {sT2}, {sW}, 5120")
    A(f"s_add_u32 {sT2}, {sT2}, {XB}")
    for n in range(4):
        A(f"s_add_u32 {sT0}, {sJ}, {n}")
        A(f"s_and_b32 {sT0}, {sT0}, 3")
        A(f"s_add_u32 {sT1}, {sT0}, {sA}")
        A(f"s_and_b32 {sT1}, {sT1}, 3")
        A(f"s_lshl_b32 {sSO}, {sT1}, 8")
        A(f"s_mul_i32 {sT0}, {sT0}, {XR}")
        A(f"s_add_u32 {sXreg[n]}, {sT0}, {sT2}")
        for i in range(5):
            A(f"s_add_u32 m0, {sXreg[n]}, {i * 1024}")
            t = A(f"buffer_load_dwordx4 {vXD[i]}, {srd['x']}, {sSO} offen lds")
        xtok.append(t)
        if n == 0:
            vPF = V.alloc(2, "pf")
            A(f"s_getpc_b64 {s64}")
            A(f"v_lshlrev_b32 {vT0}, 7, v0")
            A(f"v_min_u32 {vT1}, L_CODE_END-{KNAME}-2048, {vT0}")
            A(f"global_load_dword {vPF[0]}, {vT1}, {s64}")
            if opt.get("pf2", True):
                A(f"v_add_u32 {vT0}, 0x8000, {vT0}")
                A(f"v_min_u32 {vT0}, L_CODE_END-{KNAME}-2048, {vT0}")
                A(f"global_load_dword {vPF[1]}, {vT0}, {s64}")
            mk_srd("w1", sP[8:10], 512 * 1024)
            mk_srd("qkv", sP[2:4], 512 * 3072)
    V.free(vXD)
    mk_srd("wo", sP[4:6], 512 * 1024)
    mk_srd("w2", sP[10:12], 512 * 1024)
    mk_srd("w3", sP[12:14], 512 * 3584)
    mk_srd("w4", sP[14:16], 1792 * 1024)
    mk_srd("out", sQ[0:2], 2048 * 1024)
    S.free(sP, sQ, sWp)

    vWB = [V.alloc(1, f"wb{i}") for i in range(4)]
    vWA1, vWA3 = V.alloc(1, "wa1"), V.alloc(1, "wa3")
    vSB = V.alloc(1, "sb16")
    vR8 = V.alloc(1, "l>>3")
    A(f"v_lshrrev_b32 {vR8}, 3, {vL}")
    A(f"v_and_b32 {vT0}, 1, {vG}")
    A(f"v_lshlrev_b32 {vT0}, 2, {vT0}")
    A(f"v_and_b32 {vT1}, 7, {vL}")
    A(f"v_xor_b32 {vT0}, {vT0}, {vT1}")
    A(f"v_lshlrev_b32 {vSB}, 4, {vT0}")
    A(f"s_lshl_b32 {sT0}, {sW}, 15")
    A(f"s_lshl_b32 {sT1}, {sJ}, 7")
    A(f"s_add_u32 {sT0}, {sT0}, {sT1}")
    A(f"v_lshl_add_u32 {vT0}, {vR8}, 10, {vSB}")
    A(f"v_add_u32 {vWB[0]}, {sT0}, {vT0}")
    for i in range(1, 4):
        A(f"v_add_u32 {vWB[i]}, {i * 7168}, {vWB[0]}")
    A(f"v_xor_b32 {vT1}, 32, {vWB[0]}")
    A(f"v_add_u32 {vWA1}, 7168, {vT1}")
    A(f"v_add_u32 {vWA3}, {3 * 7168}, {vT1}")
    A(f"s_lshl_b32 {sM0W}, {sW}, 12")
    W1S = [RING + 8192 + 16384 * c for c in range(4)]
    w1tok = []
    for c in range(4):
        A(f"s_add_u32 {sT0}, {sA}, {c}")
        A(f"s_and_b32 {sT0}, {sT0}, 3")
        A(f"s_lshl_b32 {sSO}, {sT0}, 17")
        A(f"s_add_u32 m0, {sM0W}, {W1S[c]}")
        for i, vo in enumerate((vWB[0], vWA1, vWB[2], vWA3)):
            t = A(f"buffer_load_dwordx4 {vo}, {srd['w1']}, {sSO} offen offset:{i * 1024} lds")
        w1tok.append(t)
    V.free(vWA1, vWA3)
    stamp("issued")

    A(f"s_lshr_b32 {sKH}, {sW}, 1")
    A(f"s_and_b32 {sMH}, {sW}, 1")
    A(f"s_min_u32 {sTILE}, {sLI}, 13")
    A(f"s_mov_b32 {sC[0]}, {f2u(C0)}")
    A(f"s_mov_b32 {sC[1]}, {f2u(C1)}")
    vWQ = [V.alloc(1, f"wq{i}") for i in range(2)]
    A(f"s_lshl_b32 {sT0}, {sW}, 4")
    A(f"v_add_u32 {vT0}, {sT0}, {vR8}")
    A(f"v_mul_u32_u24 {vT0}, 3072, {vT0}")
    A(f"s_lshl_b32 {sT1}, {sJ}, 7")
    A(f"v_add3_u32 {vWQ[0]}, {vT0}, {sT1}, {vSB}")
    A(f"v_xor_b32 {vT1}, 32, {vWQ[0]}")
    A(f"v_add_u32 {vWQ[1]}, {8 * 3072}, {vT1}")
    vW3 = [V.alloc(1, f"w3_{i}") for i in range(4)]
    A(f"s_lshl_b32 {sT0}, {sW}, 5")
    A(f"v_add_u32 {vT0}, {sT0}, {vR8}")
    A(f"v_mul_u32_u24 {vT0}, 3584, {vT0}")
    A(f"v_add_u32 {vW3[0]}, {vT0}, {vSB}")
    for i in range(1, 4):
        A(f"v_add_u32 {vW3[i]}, {i * (8 * 3584 - 1024)}, {vW3[0]}")
    V.free(vSB, vR8)

    vXA = [V.alloc(1, f"xa{t}") for t in range(4)]
    vXH = [V.alloc(1, f"xh{t}") for t in range(4)]
    vXS = [V.alloc(1, f"xs{t}") for t in range(4)]
    sSH = S.alloc(1, "14-shift")
    A(f"s_lshr_b32 {sT0}, {sJ}, 1")
    A(f"s_lshl_b32 {sT0}, {sT0}, 3")
    A(f"s_lshr_b32 {sSH}, 0x100c0f0d, {sT0}")
    A(f"s_and_b32 {sSH}, {sSH}, 0xff")

    def xaddr(dst, rho):
        A(f"v_xor_b32 {vT1}, {vG}, {rho}")
        A(f"v_and_b32 {vT1}, 15, {vT1}")
        A(f"v_lshlrev_b32 {vT1}, 4, {vT1}")
        A(f"v_lshl_add_u32 {vT1}, {rho}, 8, {vT1}")
        A(f"v_add_u32 {dst[0]}, {XB}, {vT1}")
        for t in range(1, 4):
            A(f"v_xor_b32 {dst[t]}, {t * 64}, {dst[0]}")

    A(f"v_add_u32 {vT0}, 14, {vM16}")
    xaddr(vXA, vT0)
    A(f"v_add_u32 {vT0}, 78, {vM16}")
    A(f"v_subrev_u32 {vT2}, 80, {vT0}")
    A(f"v_min_u32 {vT0}, {vT0}, {vT2}")
    xaddr(vXH, vT0)
    A(f"v_add_u32 {vT0}, {sSH}, {vM16}")
    xaddr(vXS, vT0)
    vW1A, vWQA = V.alloc(1, "w1a"), V.alloc(1, "wqa")
    vRr, vC4 = V.alloc(1, "r"), V.alloc(1, "c4")
    A(f"v_lshrrev_b32 {vRr}, 2, {vM16}")
    A(f"v_and_b32 {vC4}, 3, {vL}")
    A(f"s_lshl_b32 {sT0}, {sW}, 5")
    A(f"v_lshl_add_u32 {vT0}, {vC4}, 3, {sT0}")
    A(f"v_lshrrev_b32 {vT1}, 1, {vRr}")
    A(f"v_lshlrev_b32 {vT1}, 6, {vT1}")
    A(f"v_xor_b32 {vT0}, {vT0}, {vT1}")
    A(f"v_and_b32 {vT2}, 1, {vG}")
    A(f"v_lshlrev_b32 {vT2}, 5, {vT2}")
    A(f"v_xor_b32 {vT0}, {vT0}, {vT2}")
    A(f"v_lshl_add_u32 {vT0}, {vRr}, 7, {vT0}")
    A(f"v_lshl_add_u32 {vW1A}, {vG}, 10, {vT0}")
    A(f"v_add_u32 {vW1A}, {W1S[0]}, {vW1A}")
    A(f"v_mul_u32_u24 {vT2}, 3072, {vG}")
    A(f"v_add_u32 {vWQA}, {vT2}, {vT0}")
    A(f"v_add_u32 {vWQA}, {RING}, {vWQA}")
    vHalf, vM32 = V.alloc(1, "half"), V.alloc(1, "m32")
    A(f"v_lshrrev_b32 {vHalf}, 5, {vL}")
    A(f"v_and_b32 {vM32}, 31, {vL}")
    vBN = [V.alloc(1, f"bn{i}") for i in range(2)]
    vBP = [V.alloc(1, f"bp{i}") for i in range(2)]
    vB3 = [V.alloc(1, f"b3{i}") for i in range(2)]
    A(f"v_and_b32 {vT2}, 1, {vG}")
    A(f"v_lshlrev_b32 {vT2}, 5, {vT2}")
    A(f"v_lshl_add_u32 {vT0}, {vC4}, 3, {vT2}")
    A(f"v_xor_b32 {vT0}, {vT0}, {vT1}")
    A(f"v_lshl_add_u32 {vT0}, {vRr}, 7, {vT0}")
    A(f"v_lshl_add_u32 {vB3[0]}, {vHalf}, 9, {vT0}")
    A(f"v_xor_b32 {vB3[1]}, 64, {vB3[0]}")
    A(f"s_mul_i32 {sT0}, {sKH}, {8192 + 64}")
    A(f"v_xor_b32 {vBP[0]}, {sT0}, {vB3[0]}")
    A(f"v_xor_b32 {vBP[1]}, 64, {vBP[0]}")
    A(f"v_lshl_add_u32 {vT0}, {vHalf}, 10, {vT0}")
    A(f"v_xor_b32 {vBN[0]}, {sT0}, {vT0}")
    A(f"v_xor_b32 {vBN[1]}, 64, {vBN[0]}")
    V.free(vRr, vC4)
    vOnes = V.alloc(4, "ones")
    for i in range(4):
        A(f"v_mov_b32 {vOnes[i]}, 0x3f803f80")
    A(f"v_lshlrev_b32 {vT0}, 3, {vL}")
    A(f"ds_write_b64 {vT0}, {vZ4[0:2]} offset:{CS3}")
    A(f"v_mov_b32 {vT1}, 0")
    A(f"ds_write_b128 {vT1}, {vZ4} offset:{MR}")
    A(f"ds_write_b64 {vT1}, {vZ4[0:2]} offset:{MEAN}")
    A(f"ds_write_b64 {vT1}, {vZ4[0:2]} offset:{RSTD}")

    sacc = V.alloc(10, "stat acc")
    sbuf = V.alloc(20, "stat buf")
    for i in range(10):
        A(f"v_mov_b32 {sacc[i]}, 0")
    for n in range(4):
        A.wait(vm=xtok[n])
        if n == 0:
            lab = A.newlabel("NLEAD")
            A(f"s_or_b32 {sT0}, {sLI}, {sW}")
            A(f"s_cbranch_scc1 {lab}")
            A.cond_begin()
            A(f"buffer_atomic_add_x2 {vArr}, {vL0}, {srd['dbg']}, {sARO} offen sc1", count=False)
            A.cond_end()
            A.label(lab)
            stamp("x0")
        A(f"v_add_u32 {vT0}, {sXreg[n]}, {vL16}")
        for i in range(5):
            A(f"ds_read_b128 {sbuf[4 * i:4 * i + 4]}, {vT0} offset:{i * 1024}")
        for i in range(5):
            for e in range(4):
                A(f"v_dot2c_f32_bf16 {sacc[2 * i]}, {sbuf[4 * i + e]}, {vOnes[0]}")
                A(f"v_dot2c_f32_bf16 {sacc[2 * i + 1]}, {sbuf[4 * i + e]}, {sbuf[4 * i + e]}")
    S.free(sXreg)
    stamp("x3")
    for sh in (8, 4, 2, 1):
        for i in range(10):
            A(f"v_add_f32_dpp {sacc[i]}, {sacc[i]}, {sacc[i]} row_ror:{sh} row_mask:0xf bank_mask:0xf")
    for i in range(1, 5):
        m = 0x0001000100010001 << i
        A(f"s_mov_b32 {s64[0]}, 0x{m & 0xffffffff:x}")
        A(f"s_mov_b32 {s64[1]}, 0x{m >> 32:x}")
        A(f"v_cndmask_b32 {sacc[0]}, {sacc[0]}, {sacc[2 * i]}, {s64}")
        A(f"v_cndmask_b32 {sacc[1]}, {sacc[1]}, {sacc[2 * i + 1]}, {s64}")
    st = sbuf
    A(f"v_mul_f32 {st[0]}, {f2u(1 / 512)}, {sacc[0]}")
    A(f"v_mul_f32 {st[4]}, {st[0]}, {st[0]}")
    A(f"v_mul_f32 {st[5]}, {f2u(1 / 512)}, {sacc[1]}")
    A(f"v_sub_f32 {st[4]}, {st[5]}, {st[4]}")
    A(f"v_max_f32 {st[4]}, 0, {st[4]}")
    A(f"v_add_f32 {st[5]}, {f2u(EPS)}, {st[4]}")
    A(f"v_rsq_f32 {st[1]}, {st[5]}")
    A(f"v_mov_b32 {st[2]}, {st[0]}")
    A(f"v_mul_f32 {st[5]}, {st[1]}, {st[1]}")
    A(f"v_fmaak_f32 {st[5]}, {st[4]}, {st[5]}, {f2u(EPS)}")
    A(f"v_rsq_f32 {st[5]}, {st[5]}")
    A(f"s_mul_i32 {sT0}, {sW}, 20")
    A(f"s_add_u32 {sT0}, {sT0}, 2")
    A(f"v_mul_f32 {st[3]}, {st[1]}, {st[5]}")
    A(f"v_lshl_add_u32 {vT0}, {vM16}, 2, {vG}")
    A(f"v_add_u32 {vT0}, {sT0}, {vT0}")
    A(f"v_lshlrev_b32 {vT1}, 3, {vT0}")
    A(f"v_lshlrev_b32 {vT2}, 2, {vT0}")
    A("s_mov_b32 exec_lo, 0x001f001f")
    A("s_mov_b32 exec_hi, 0x001f001f")
    A(f"ds_write_b64 {vT1}, {st[0:2]} offset:{MR}")
    A(f"ds_write_b64 {vT1}, {st[2:4]} offset:{MH}")
    A(f"ds_write_b32 {vT2}, {st[0]} offset:{MEAN}")
    A(f"ds_write_b32 {vT2}, {st[1]} offset:{RSTD}")
    A("s_mov_b64 exec, -1")
    V.free(sacc, sbuf)

    def run_steps(steps, k):
        if steps[0].get("pre"):
            steps[0]["pre"]()
        for r in steps[0]["reads"]:
            r() if callable(r) else A(r)
        for n, stp in enumerate(steps):
            A.wait(lg=A.lg_issued)
            side = []
            if n + 1 < len(steps):
                nx = steps[n + 1]
                if nx.get("pre"):
                    nx["pre"]()
                side = list(nx["reads"])
            elif stp.get("last"):
                stp["last"]()
            bg = stp["bg"]() if stp.get("bg") else []
            weave(stp["mfma"], side + bg, k)

    def dma_qkv(s):
        tok = {}
        base = RING + QS * (s % 3)
        out = []

        def setup():
            A(f"s_lshl_b32 {sT0}, {sA}, 1")
            A(f"s_add_u32 {sT0}, {sT0}, {s}")
            A(f"s_and_b32 {sT0}, {sT0}, 7")
            A(f"s_mul_i32 {sSO}, {sT0}, {64 * 3072}")
            A(f"s_mul_i32 {sT1}, {sW}, 6144")
        out.append(setup)
        for i in range(2):
            for g3 in range(3):
                def f(i=i, g3=g3):
                    if g3 == 0:
                        A(f"s_add_u32 m0, {sT1}, {base + i * 3072}")
                    tok["t"] = A(f"buffer_load_dwordx4 {vWQ[i]}, {srd['qkv']}, {sSO} offen offset:{g3 * 1024} lds")
                out.append(f)
        return out, tok

    def dma_chunk(name, voffs, setup_so, slot):
        tok = {}
        out = []
        for i in range(4):
            def f(i=i):
                if i == 0:
                    setup_so()
                    A(f"s_add_u32 m0, {sM0W}, {slot}")
                tok["t"] = A(f"buffer_load_dwordx4 {voffs[i]}, {srd[name]}, {sSO} offen offset:{i * 1024} lds")
            out.append(f)
        return out, tok

    def so_small(q):
        def f():
            A(f"s_add_u32 {sT0}, {sA}, {q}")
            A(f"s_and_b32 {sT0}, {sT0}, 3")
            A(f"s_mul_i32 {sT1}, {sKH}, 3")
            A(f"s_add_u32 {sT0}, {sT0}, {sT1}")
            A(f"s_lshl_b32 {sSO}, {sT0}, 16")
        return f

    def rot7(q, dst):
        A(f"s_lshl_b32 {dst}, {sA}, 1")
        A(f"s_add_u32 {dst}, {dst}, {q % 7}")
        A(f"s_cmp_ge_u32 {dst}, 7")
        A(f"s_cselect_b32 {sT3}, 7, 0")
        A(f"s_sub_u32 {dst}, {dst}, {sT3}")

    def so_w4(q):
        def f():
            rot7(q, sT0)
            A(f"s_lshl_b32 {sT0}, {sT0}, 1")
            A(f"s_mul_i32 {sT1}, {sKH}, 13")
            A(f"s_add_u32 {sT0}, {sT0}, {sT1}")
            A(f"s_add_u32 {sT0}, {sT0}, {q // 7}")
            A(f"s_lshl_b32 {sSO}, {sT0}, 16")
        return f

    def so_w3(p, c):
        def f():
            A(f"s_lshl_b32 {sT0}, {sCL}, 1")
            A(f"s_add_u32 {sT0}, {sT0}, {c}")
            A(f"s_and_b32 {sT0}, {sT0}, 3")
            A(f"s_mul_i32 {sT0}, {sT0}, {128 * 3584}")
            A(f"s_lshl_b32 {sT1}, {sTILE}, 8")
            A(f"s_add_u32 {sT0}, {sT0}, {sT1}")
            A(f"s_add_u32 {sSO}, {sT0}, {p * 128}")
        return f

    ST = " sc1"

    def flag_set(off_fn):
        off_fn()
        A(f"s_add_u32 {sT0}, {sT0}, {sFLB}")
        A(f"buffer_store_dword {vOne}, {vL0}, {srd['ws']}, {sT0} offen sc1")

    vF = V.alloc(2, "flagval")
    vI16, vI7 = V.alloc(1, "i16"), V.alloc(1, "i7")
    A(f"v_lshlrev_b32 {vI16}, 2, {vM16}")
    A(f"v_min_u32 {vI7}, 24, {vI16}")

    def poll(off_fn, vidx):
        off_fn()
        A(f"s_add_u32 {sT0}, {sT0}, {sFLB}")
        lab, done = A.newlabel("POLL"), A.newlabel("PDONE")
        A.label(lab)
        A(f"buffer_load_dword {vF[0]}, {vidx}, {srd['ws']}, {sT0} offen sc1")
        A.wait_all(lg=False, force=True)
        A(f"v_cmp_ne_u32 vcc, 1, {vF[0]}")
        A("s_nop 4")
        A(f"s_cbranch_vccz {done}")
        A(f"s_sub_u32 {sTO}, {sTO}, 1")
        A(f"s_cbranch_scc0 {lab}")
        A(f"s_mov_b32 {sTO}, 0")
        A.label(done)

    acch = V.alloc(16, "acch")
    csh = V.alloc(4, "csh")
    xf = [[V.alloc(4, f"xf{p}{b}") for b in range(5)] for p in range(2)]
    wf = [[V.alloc(4, f"wf{p}{g}") for g in range(3)] for p in range(2)]
    qd = {}
    for s in range(8):
        qd[s] = dma_qkv(s)
    xres = V.alloc(8, "xres")
    vMRo = V.alloc(2, "mean/rstd own row")

    def read_xres():
        A(f"s_lshr_b32 {sT0}, {sJ}, 1")
        A(f"s_sub_u32 {sT0}, {sT0}, {sA}")
        A(f"s_and_b32 {sT0}, {sT0}, 3")
        A(f"s_mul_i32 {sT0}, {sT0}, {XR}")
        A(f"s_add_u32 {sT0}, {sT0}, {XB}")
        A(f"s_lshl_b32 {sT1}, {sMH}, 5")
        A(f"s_add_u32 {sT1}, {sT1}, 14")
        A(f"v_add_u32 {vT0}, {sT1}, {vM32}")
        A(f"s_and_b32 {sT2}, {sJ}, 1")
        A(f"s_lshl_b32 {sT2}, {sT2}, 1")
        A(f"s_add_u32 {sT2}, {sT2}, {sKH}")
        A(f"s_lshl_b32 {sT2}, {sT2}, 2")
        A(f"v_xor_b32 {vT1}, {sT2}, {vT0}")
        A(f"v_and_b32 {vT1}, 15, {vT1}")
        A(f"v_lshlrev_b32 {vT1}, 4, {vT1}")
        A(f"v_lshl_add_u32 {vT1}, {vT0}, 8, {vT1}")
        A(f"v_lshl_add_u32 {vT1}, {vHalf}, 3, {vT1}")
        A(f"v_add_u32 {vT1}, {sT0}, {vT1}")
        for q in range(4):
            A(f"v_xor_b32 {vT2}, {q * 16}, {vT1}")
            A(f"ds_read_b64 {xres[2 * q:2 * q + 2]}, {vT2}")
        A(f"v_lshlrev_b32 {vT0}, 3, {vT0}")
        A(f"ds_read_b64 {vMRo}, {vT0} offset:{MR + 16}")

    steps = []
    for n in range(16):
        c, t = divmod(n, 4)
        p = n % 2
        xo = (c % 2) * XR
        rd = []
        if n == 8:
            rd += [f"v_add_u32 {vXS[i]}, {2 * XR}, {vXS[i]}" for i in range(4)]
        rd += [f"ds_read_b64_tr_b16 {wf[p][0][0:2]}, {vW1A} offset:{c * 16384 + t * 4096}",
               f"ds_read_b64_tr_b16 {wf[p][0][2:4]}, {vW1A} offset:{c * 16384 + t * 4096 + 512}"]
        rd += [f"ds_read_b128 {xf[p][b]}, {vXS[t]} offset:{xo + b * 4096}" for b in range(4)]
        mf = [f"v_mfma_f32_16x16x32_bf16 {csh}, {wf[p][0]}, {vOnes}, {csh if n else 0}"]
        mf += [f"v_mfma_f32_16x16x32_bf16 {acch[4 * b:4 * b + 4]}, {wf[p][0]}, {xf[p][b]}, {acch[4 * b:4 * b + 4] if n else 0}" for b in range(4)]
        stp = dict(reads=rd, mfma=mf)
        if t == 0:
            def pre(c=c):
                barrier(vm=w1tok[c])
                if c == 0:
                    stamp("bar1")
                    read_xres()
            stp["pre"] = pre
        if n == 3:
            stp["bg"] = lambda: qd[0][0]
        if n == 11:
            stp["bg"] = lambda: qd[1][0]
        if n == 15:
            stp["last"] = lambda: barrier()
            stp["bg"] = lambda: qd[2][0]
        steps.append(stp)
    run_steps(steps, 2)
    V.free(vXS, vW1A)
    stamp("hpass")

    hmr = V.alloc(8, "h mean/rr")
    hp = V.alloc(8, "h packed")
    gt = V.alloc(16, "gelu tmp")
    A(f"v_add_u32 {vT0}, {sSH}, {vM16}")
    A(f"v_lshlrev_b32 {vT0}, 3, {vT0}")
    for b in range(4):
        A(f"ds_read_b64 {hmr[2 * b:2 * b + 2]}, {vT0} offset:{MH + 16 + 128 * b}")
    vC0 = V.alloc(2, "c0 pair")
    A(f"v_mov_b32 {vC0[0]}, {sC[0]}")
    for half_ in range(2):
        prs = [(b, e) for b in (2 * half_, 2 * half_ + 1) for e in range(2)]
        u = lambda i: acch[4 * prs[i][0] + 2 * prs[i][1]: 4 * prs[i][0] + 2 * prs[i][1] + 2]
        mr = lambda i: hmr[2 * prs[i][0]: 2 * prs[i][0] + 2]
        cs = lambda i: csh[2 * prs[i][1]: 2 * prs[i][1] + 2]
        g_ = lambda i: gt[2 * i:2 * i + 2]
        for i in range(4):
            A(f"v_pk_fma_f32 {u(i)}, {cs(i)}, {mr(i)}, {u(i)} op_sel_hi:[1,0,1] neg_lo:[0,1,0] neg_hi:[0,1,0]")
        for i in range(4):
            A(f"v_pk_mul_f32 {u(i)}, {u(i)}, {mr(i)} op_sel:[0,1] op_sel_hi:[1,1]")
        for i in range(4):
            A(f"v_pk_mul_f32 {g_(i)}, {u(i)}, {u(i)}")
        for i in range(4):
            A(f"v_pk_fma_f32 {g_(i)}, {g_(i)}, {sC}, {vC0} op_sel:[0,1,0] op_sel_hi:[1,1,0]")
        for i in range(4):
            A(f"v_pk_mul_f32 {g_(i)}, {g_(i)}, {u(i)}")
        for i in range(8):
            A(f"v_exp_f32 {gt[i]}, {gt[i]}")
        for i in range(4):
            A(f"v_pk_add_f32 {g_(i)}, {g_(i)}, 1.0 op_sel_hi:[1,0]")
        for i in range(8):
            A(f"v_rcp_f32 {gt[i]}, {gt[i]}")
        for i in range(4):
            A(f"v_pk_mul_f32 {g_(i)}, {g_(i)}, {u(i)}")
        for i in range(4):
            A(f"v_cvt_pk_bf16_f32 {hp[4 * half_ + i]}, {gt[2 * i]}, {gt[2 * i + 1]}")
    sHO = S.alloc(1, "tile off (h/o)")
    A(f"s_lshl_b32 {sT0}, {sRB}, 6")
    A(f"s_lshl_b32 {sT1}, {sJ}, 2")
    A(f"s_add_u32 {sT0}, {sT0}, {sT1}")
    A(f"s_add_u32 {sT0}, {sT0}, {sW}")
    A(f"s_lshl_b32 {sHO}, {sT0}, 10")

    def store_pairs(pk, base):
        for p in range(2):
            A(f"v_permlane16_swap_b32 {pk[4 * p]}, {pk[4 * p + 2]}")
            A(f"v_permlane16_swap_b32 {pk[4 * p + 1]}, {pk[4 * p + 3]}")
        t = None
        for p in range(2):
            A(f"s_add_u32 {sT0}, {sHO}, {base + p * 32768}")
            t = A(f"buffer_store_dwordx4 {pk[4 * p:4 * p + 4]}, {vL16}, {srd['ws']}, {sT0} offen{ST}")
        return t
    hst = store_pairs(hp, WS_H)
    V.free(hmr, hp, gt, vC0, acch, csh)
    stamp("hstored")

    def arrival_check():
        lab, done = A.newlabel("ARR"), A.newlabel("ARRD")
        A.label(lab)
        A(f"buffer_load_dwordx2 {vF}, {vZ4[0]}, {srd['dbg']}, {sARO} offen sc1")
        A.wait_all(lg=False, force=True)
        A(f"v_sad_u8 {vT0}, {vF[0]}, 0, 0")
        A(f"v_sad_u8 {vT0}, {vF[1]}, 0, {vT0}")
        A(f"v_cmp_ne_u32 vcc, 16, {vT0}")
        A("s_nop 4")
        A(f"s_cbranch_vccz {done}")
        A(f"s_sub_u32 {sTO}, {sTO}, 1")
        A(f"s_cbranch_scc0 {lab}")
        A(f"s_mov_b32 {sTO}, 0")
        A.label(done)

    def off_ho(base):
        def f():
            A(f"s_lshl_b32 {sT0}, {sLI}, 2")
            A(f"s_add_u32 {sT0}, {sT0}, {sW}")
            A(f"s_lshl_b32 {sT0}, {sT0}, 2")
            A(f"s_add_u32 {sT0}, {sT0}, {base}")
        return f

    def off_ho_poll(base):
        def f():
            A(f"s_and_b32 {sT0}, {sRB}, 1")
            A(f"s_lshl_b32 {sT0}, {sT0}, 1")
            A(f"s_add_u32 {sT0}, {sT0}, {sKH}")
            A(f"s_lshl_b32 {sT0}, {sT0}, 6")
            A(f"s_add_u32 {sT0}, {sT0}, {base}")
        return f

    accq = V.alloc(16, "accq")
    acck = V.alloc(20, "acck")
    accv = V.alloc(20, "accv")
    csq, csk, csv = V.alloc(4, "csq"), V.alloc(4, "csk"), V.alloc(4, "csv")
    W2S = [L[0], L[1], L[2], L[8]]
    W3S = [[L[5], L[3], L[4], L[6]], [L[7], L[1], L[2], L[8]]]
    w2d = [dma_chunk("w2", vWB, so_small(q), W2S[q]) for q in range(4)]
    w3d = [[dma_chunk("w3", vW3, so_w3(p, c), W3S[p][c]) for c in range(4)] for p in range(2)]
    steps = []
    for n in range(16):
        s, u = divmod(n, 2)
        c, t = divmod(n, 4)
        p = n % 2
        xo = (c % 2) * XR
        wo_ = QS * (s % 3) + u * 12288
        rd = []
        if n == 8:
            rd += [f"v_add_u32 {r_}, {2 * XR}, {r_}" for r_ in vXA + vXH]
        for g3 in range(3):
            rd += [f"ds_read_b64_tr_b16 {wf[p][g3][0:2]}, {vWQA} offset:{wo_ + g3 * 1024}",
                   f"ds_read_b64_tr_b16 {wf[p][g3][2:4]}, {vWQA} offset:{wo_ + g3 * 1024 + 512}"]
        rd += [f"ds_read_b128 {xf[p][0]}, {vXH[t]} offset:{xo}"]
        rd += [f"ds_read_b128 {xf[p][b + 1]}, {vXA[t]} offset:{xo + b * 4096}" for b in range(4)]
        M = "v_mfma_f32_16x16x32_bf16"
        z = lambda r_: r_ if n else 0
        mf = [f"{M} {csq}, {wf[p][0]}, {vOnes}, {z(csq)}",
              f"{M} {csk}, {wf[p][1]}, {vOnes}, {z(csk)}",
              f"{M} {csv}, {vOnes}, {wf[p][2]}, {z(csv)}"]
        for kb in range(5):
            mf.append(f"{M} {acck[4 * kb:4 * kb + 4]}, {wf[p][1]}, {xf[p][kb]}, {z(acck[4 * kb:4 * kb + 4])}")
            mf.append(f"{M} {accv[4 * kb:4 * kb + 4]}, {xf[p][kb]}, {wf[p][2]}, {z(accv[4 * kb:4 * kb + 4])}")
            if kb:
                b = kb - 1
                mf.append(f"{M} {accq[4 * b:4 * b + 4]}, {wf[p][0]}, {xf[p][kb]}, {z(accq[4 * b:4 * b + 4])}")
        stp = dict(reads=rd, mfma=mf)
        if u == 0:
            def pre(s=s):
                barrier(vm=qd[s][1]["t"])
                if s == 3:
                    arrival_check()
                    flag_set(off_ho(FL_H))
            stp["pre"] = pre
        else:
            def bg(s=s):
                o = []
                if s + 3 < 8:
                    o += qd[s + 3][0]
                if s == 1:
                    o += w2d[0][0]
                if s == 3:
                    o += w2d[1][0]
                if s == 5:
                    o += w2d[2][0] + w2d[3][0]
                if s == 6:
                    o += w3d[0][0][0]
                return o
            stp["bg"] = bg
        if n == 15:
            stp["last"] = lambda: barrier()
        steps.append(stp)
    run_steps(steps, 1)
    V.free(xf, wf, vXA, vXH, vWQA, vWQ)
    stamp("qkv")

    acc = [V.alloc(16, "acc0"), V.alloc(16, "acc1")]
    wfr = [AG.alloc(32, "wfr0"), AG.alloc(32, "wfr1")]
    actA = AG.alloc(64, "actA")
    actB = AG.alloc(128, "actB")
    vRA = [V.alloc(1, "ra0"), V.alloc(1, "ra1")]
    M32 = "v_mfma_f32_32x32x16_bf16"
    par = [0]

    def w_reads(addr, base, second):
        p = par[0]
        par[0] ^= 1
        rd = [f"v_add_u32 {vRA[nb]}, {base}, {addr[nb]}" for nb in range(2)]
        for T in range(4):
            for nb in range(2):
                f = wfr[p][(T * 2 + nb) * 4:(T * 2 + nb) * 4 + 4]
                rd += [f"ds_read_b64_tr_b16 {f[0:2]}, {vRA[nb]} offset:{T * 2048}",
                       f"ds_read_b64_tr_b16 {f[2:4]}, {vRA[nb]} offset:{T * 2048 + second}"]
        return rd, p

    def stage_mfma(p, accs, act, zero=(False, False)):
        mf = []
        for T in range(4):
            for nb in range(2):
                cin = 0 if (T == 0 and zero[nb]) else accs[nb]
                mf.append(f"{M32} {accs[nb]}, {wfr[p][(T * 2 + nb) * 4:(T * 2 + nb) * 4 + 4]}, {act[4 * T:4 * T + 4]}, {cin}")
        return mf

    def act_loads(dst, so_fn):
        out = []
        for T in range(4):
            def f(T=T):
                if T == 0:
                    so_fn()
                A(f"buffer_load_dwordx4 {dst[4 * T:4 * T + 4]}, {vL16}, {srd['ws']}, {sAO} offen offset:{T * 1024} sc1")
            out.append(f)
        return out

    sAO = S.alloc(1, "act soff")
    sMB = S.alloc(1, "mb32 own")
    A(f"s_lshl_b32 {sMB}, {sRB}, 1")
    A(f"s_add_u32 {sMB}, {sMB}, {sMH}")

    def so_act_small(base, q):
        def f():
            A(f"s_add_u32 {sT0}, {sA}, {q}")
            A(f"s_and_b32 {sT0}, {sT0}, 3")
            A(f"s_lshl_b32 {sT1}, {sMB}, 1")
            A(f"s_add_u32 {sT1}, {sT1}, {sKH}")
            A(f"s_lshl_b32 {sT1}, {sT1}, 2")
            A(f"s_add_u32 {sT0}, {sT0}, {sT1}")
            A(f"s_lshl_b32 {sT0}, {sT0}, 12")
            A(f"s_add_u32 {sAO}, {sT0}, {base}")
        return f

    def run(lst):
        for it in lst:
            it() if callable(it) else A(it)

    poll(off_ho_poll(FL_H), vI16)
    stamp("hpolled")
    for q in range(4):
        run(act_loads(actA[16 * q:16 * q + 16], so_act_small(WS_H, q)))
    xfp = V.alloc(16, "x fp32")
    for i in range(8):
        A(f"v_lshlrev_b32 {xfp[2 * i]}, 16, {xres[i]}")
        A(f"v_and_b32 {xfp[2 * i + 1]}, 0xffff0000, {xres[i]}")
    for i in range(8):
        A(f"v_pk_add_f32 {acc[0][2 * i:2 * i + 2]}, {xfp[2 * i:2 * i + 2]}, {vMRo} op_sel_hi:[1,0] neg_lo:[0,1] neg_hi:[0,1]")
    for i in range(8):
        A(f"v_pk_mul_f32 {acc[0][2 * i:2 * i + 2]}, {acc[0][2 * i:2 * i + 2]}, {vMRo} op_sel:[0,1] op_sel_hi:[1,1]")
    V.free(xres, vMRo)
    steps = []
    for q in range(4):
        rd, p = w_reads(vBN, W2S[q], 512)
        stp = dict(reads=rd, mfma=stage_mfma(p, acc, actA[16 * q:16 * q + 16], zero=(False, q == 0)))
        if q == 0:
            stp["pre"] = lambda: barrier(vm=w2d[3][1]["t"])
            stp["bg"] = lambda: w3d[0][1][0]
        if q == 1:
            stp["bg"] = lambda: w3d[0][2][0]
        if q == 2:
            stp["bg"] = lambda: w3d[0][3][0]
        if q == 3:
            stp["last"] = lambda: barrier()
            stp["bg"] = lambda: w3d[1][0][0]
        steps.append(stp)
    run_steps(steps, 3)
    stamp("p2mm")

    vEXw, vEXr = V.alloc(1, "exw"), V.alloc(1, "exr")
    A(f"v_add_u32 {vEXw}, {sM0W}, {vL16}")
    A(f"v_xor_b32 {vEXr}, 8192, {vEXw}")

    def exchange(slot, between=None):
        A(f"v_add_u32 {vT0}, {slot}, {vEXw}")
        A(f"v_add_u32 {vT1}, {slot}, {vEXr}")
        for q in range(4):
            A(f"ds_write_b128 {vT0}, {acc[1][4 * q:4 * q + 4]} offset:{q * 1024}")
        barrier()
        for q in range(4):
            A(f"ds_read_b128 {acc[1][4 * q:4 * q + 4]}, {vT1} offset:{q * 1024}")
        for i in range(8):
            A(f"v_pk_add_f32 {acc[0][2 * i:2 * i + 2]}, {acc[0][2 * i:2 * i + 2]}, {acc[1][2 * i:2 * i + 2]}")
    exchange(L[0])
    pk8 = V.alloc(8, "pk8")
    for i in range(8):
        A(f"v_cvt_pk_bf16_f32 {pk8[i]}, {acc[0][2 * i]}, {acc[0][2 * i + 1]}")
    A(f"s_lshl_b32 {sT0}, {sMB}, 3")
    A(f"s_add_u32 {sT0}, {sT0}, {sJ}")
    A(f"s_lshl_b32 {sT0}, {sT0}, 1")
    A(f"s_add_u32 {sT2}, {sT0}, {sKH}")
    A(f"s_lshl_b32 {sT0}, {sT2}, 11")
    A(f"s_add_u32 {sT0}, {sT0}, {WS_X1}")
    for c in range(2):
        A(f"buffer_store_dwordx4 {pk8[4 * c:4 * c + 4]}, {vL16}, {srd['ws']}, {sT0} offen offset:{c * 1024}{ST}")
    sq = acc[1]
    A(f"v_pk_add_f32 {sq[0:2]}, {acc[0][0:2]}, {acc[0][2:4]}")
    A(f"v_pk_mul_f32 {sq[2:4]}, {acc[0][0:2]}, {acc[0][0:2]}")
    A(f"v_pk_fma_f32 {sq[2:4]}, {acc[0][2:4]}, {acc[0][2:4]}, {sq[2:4]}")
    for i in range(2, 8):
        A(f"v_pk_add_f32 {sq[0:2]}, {sq[0:2]}, {acc[0][2 * i:2 * i + 2]}")
        A(f"v_pk_fma_f32 {sq[2:4]}, {acc[0][2 * i:2 * i + 2]}, {acc[0][2 * i:2 * i + 2]}, {sq[2:4]}")
    A(f"v_add_f32 {sq[0]}, {sq[0]}, {sq[1]}")
    A(f"v_add_f32 {sq[2]}, {sq[2]}, {sq[3]}")
    A(f"v_permlane32_swap_b32 {sq[0]}, {sq[2]}")
    A(f"v_add_f32 {sq[0]}, {sq[0]}, {sq[2]}")
    A(f"v_lshlrev_b32 {vT0}, 2, {vL}")
    A(f"s_lshl_b32 {sT0}, {sT2}, 8")
    A(f"s_add_u32 {sT0}, {sT0}, {WS_ST}")
    x1st = A(f"buffer_store_dword {sq[0]}, {vT0}, {srd['ws']}, {sT0} offen{ST}")
    for i in range(8):
        A(f"v_pk_add_f32 {acc[0][2 * i:2 * i + 2]}, {acc[0][2 * i:2 * i + 2]}, {xfp[2 * i:2 * i + 2]}")
    V.free(xfp)
    stamp("x1stored")
    for c in range(1, 4):
        run(w3d[1][c][0])

    kmr = V.alloc(10, "k mean/rstd")
    vmean = V.alloc(20, "v mean")
    vrstd = V.alloc(20, "v rstd")
    A(f"v_lshlrev_b32 {vT0}, 3, {vM16}")
    A(f"v_lshlrev_b32 {vT1}, 4, {vG}")
    for kb in range(5):
        A(f"ds_read_b64 {kmr[2 * kb:2 * kb + 2]}, {vT0} offset:{MR + 128 * kb}")
    for kb in range(5):
        A(f"ds_read_b128 {vmean[4 * kb:4 * kb + 4]}, {vT1} offset:{MEAN + 64 * kb}")
        A(f"ds_read_b128 {vrstd[4 * kb:4 * kb + 4]}, {vT1} offset:{RSTD + 64 * kb}")
    Qp, Kp, Vp = V.alloc(8, "Qp"), V.alloc(10, "Kp"), V.alloc(10, "Vp")
    vPar, vMs = V.alloc(1, "par"), V.alloc(2, "ms")
    selS, selP = V.alloc(2, "selS"), V.alloc(2, "selP")
    A(f"v_and_b32 {vT2}, 1, {vL}")
    A(f"v_sub_u32 {vPar}, 0, {vT2}")
    A(f"v_lshl_add_u32 {vT3}, {vG}, 2, {vT2}")
    for e in range(2):
        A(f"v_sub_u32 {vMs[e]}, {vM16}, {vT3}")
        if e:
            A(f"v_subrev_u32 {vMs[e]}, 2, {vMs[e]}")
        A(f"v_ashrrev_i32 {vMs[e]}, 31, {vMs[e]}")
        A(f"v_not_b32 {vMs[e]}, {vMs[e]}")
        lo, hi = (0x0c0c0100, 0x01000c0c) if e == 0 else (0x0c0c0302, 0x03020c0c)
        A(f"v_mov_b32 {vT0}, 0x{hi:x}")
        A(f"v_mov_b32 {vT1}, 0x{lo:x}")
        A(f"v_bfi_b32 {vT0}, {vPar}, {vT0}, {vT1}")
        A(f"v_mov_b32 {vT1}, 0x0c0c0c0c")
        A(f"v_bfi_b32 {selS[e]}, {vMs[e]}, {vT0}, {vT1}")
        A(f"v_bfi_b32 {selP[e]}, {vMs[e]}, {vT1}, {vT0}")

    def fold_rows(accr, cs, mr, dst):
        for e in range(2):
            u = accr[2 * e:2 * e + 2]
            A(f"v_pk_fma_f32 {u}, {cs[2 * e:2 * e + 2]}, {mr}, {u} op_sel_hi:[1,0,1] neg_lo:[0,1,0] neg_hi:[0,1,0]")
        for e in range(2):
            u = accr[2 * e:2 * e + 2]
            A(f"v_pk_mul_f32 {u}, {u}, {mr} op_sel:[0,1] op_sel_hi:[1,1]")
        for e in range(2):
            A(f"v_cvt_pk_bf16_f32 {dst[e]}, {accr[2 * e]}, {accr[2 * e + 1]}")
    for kb in range(5):
        fold_rows(acck[4 * kb:4 * kb + 4], csk, kmr[2 * kb:2 * kb + 2], Kp[2 * kb:2 * kb + 2])
    for b in range(4):
        fold_rows(accq[4 * b:4 * b + 4], csq, kmr[2 * b + 2:2 * b + 4], Qp[2 * b:2 * b + 2])
    M16 = "v_mfma_f32_16x16x16_bf16"
    Ss, Sp = accq, acck
    for b in range(4):
        A(f"{M16} {Ss[4 * b:4 * b + 4]}, {Kp[2 * b + 2:2 * b + 4]}, {Qp[2 * b:2 * b + 2]}, 0")
        A(f"{M16} {Sp[4 * b:4 * b + 4]}, {Kp[2 * b:2 * b + 2]}, {Qp[2 * b:2 * b + 2]}, 0")
    for kb in range(5):
        for e in range(2):
            u = accv[4 * kb + 2 * e:4 * kb + 2 * e + 2]
            A(f"v_pk_fma_f32 {u}, {vmean[4 * kb + 2 * e:4 * kb + 2 * e + 2]}, {csv[0:2]}, {u} neg_lo:[1,0,0] neg_hi:[1,0,0]")
        for e in range(2):
            u = accv[4 * kb + 2 * e:4 * kb + 2 * e + 2]
            A(f"v_pk_mul_f32 {u}, {u}, {vrstd[4 * kb + 2 * e:4 * kb + 2 * e + 2]}")
        for e in range(2):
            A(f"v_cvt_pk_bf16_f32 {Vp[2 * kb + e]}, {accv[4 * kb + 2 * e]}, {accv[4 * kb + 2 * e + 1]}")
    V.free(kmr, vmean, vrstd, csq, csk, csv)
    lg = V.alloc(8, "logits")
    mx = V.alloc(4, "mx")
    mt = V.alloc(4, "mt")
    A(f"s_cmp_eq_u32 {sRB}, 0")
    A(f"s_cselect_b32 {sT0}, -1, 0")
    A(f"v_mov_b32 {vT0}, {sT0}")
    A(f"v_mov_b32 {vT1}, {f2u(-4e9)}")
    for b in range(4):
        for e in range(2):
            A(f"v_bfi_b32 {Ss[4 * b + 2 * e]}, {vPar}, {Ss[4 * b + 2 * e + 1]}, {Ss[4 * b + 2 * e]}")
            A(f"v_bfi_b32 {Sp[4 * b + 2 * e]}, {vPar}, {Sp[4 * b + 2 * e + 1]}, {Sp[4 * b + 2 * e]}")
            if b == 0:
                A(f"v_bfi_b32 {Sp[2 * e]}, {vT0}, {vT1}, {Sp[2 * e]}")
            A(f"v_bfi_b32 {lg[2 * b + e]}, {vMs[e]}, {Ss[4 * b + 2 * e]}, {Sp[4 * b + 2 * e]}")
    for b in range(4):
        A(f"v_max_f32 {mx[b]}, {lg[2 * b]}, {lg[2 * b + 1]}")
    for sw in ("v_permlane16_swap_b32", "v_permlane32_swap_b32"):
        for b in range(4):
            A(f"v_mov_b32 {mt[b]}, {mx[b]}")
        for b in range(4):
            A(f"{sw} {mx[b]}, {mt[b]}")
        for b in range(4):
            A(f"v_max_f32 {mx[b]}, {mx[b]}, {mt[b]}")
    cs_ = f2u(0.25 * LOG2E)
    for b in range(4):
        for e in range(2):
            A(f"v_sub_f32 {lg[2 * b + e]}, {lg[2 * b + e]}, {mx[b]}")
    for i in range(8):
        A(f"v_mul_f32 {lg[i]}, {cs_}, {lg[i]}")
    for i in range(8):
        A(f"v_exp_f32 {lg[i]}, {lg[i]}")
    Pz = V.alloc(8, "pk,0 pairs")
    Ps, Pp = V.alloc(8, "Psame"), V.alloc(8, "Pprev")
    for b in range(4):
        A(f"v_cvt_pk_bf16_f32 {Pz[2 * b]}, {lg[2 * b]}, {lg[2 * b + 1]}")
        A(f"v_mov_b32 {Pz[2 * b + 1]}, 0")
    for b in range(4):
        for e in range(2):
            A(f"v_perm_b32 {Ps[2 * b + e]}, {Pz[2 * b]}, {Pz[2 * b]}, {selS[e]}")
            A(f"v_perm_b32 {Pp[2 * b + e]}, {Pz[2 * b]}, {Pz[2 * b]}, {selP[e]}")
    Osum, Oacc = acck, accq
    for b in range(4):
        A(f"{M16} {Osum[4 * b:4 * b + 4]}, {vOnes[0:2]}, {Pz[2 * b:2 * b + 2]}, 0")
    for b in range(4):
        A(f"{M16} {Oacc[4 * b:4 * b + 4]}, {Vp[2 * b + 2:2 * b + 4]}, {Ps[2 * b:2 * b + 2]}, 0")
    for b in range(4):
        A(f"{M16} {Oacc[4 * b:4 * b + 4]}, {Vp[2 * b:2 * b + 2]}, {Pp[2 * b:2 * b + 2]}, {Oacc[4 * b:4 * b + 4]}")
    A.wait(vm=x1st)

    def off_x1():
        A(f"s_and_b32 {sT0}, {sMB}, 3")
        A(f"s_lshl_b32 {sT0}, {sT0}, 3")
        A(f"s_add_u32 {sT0}, {sT0}, {sJ}")
        A(f"s_lshl_b32 {sT0}, {sT0}, 1")
        A(f"s_add_u32 {sT0}, {sT0}, {sKH}")
        A(f"s_lshl_b32 {sT0}, {sT0}, 2")
        A(f"s_add_u32 {sT0}, {sT0}, {FL_X1}")
    flag_set(off_x1)
    for b in range(4):
        A(f"v_rcp_f32 {Osum[4 * b]}, {Osum[4 * b]}")
    for b in range(4):
        for e in range(2):
            u = Oacc[4 * b + 2 * e:4 * b + 2 * e + 2]
            A(f"v_pk_mul_f32 {u}, {u}, {Osum[4 * b:4 * b + 2]} op_sel_hi:[1,0]")
    for b in range(4):
        for e in range(2):
            A(f"v_cvt_pk_bf16_f32 {pk8[2 * b + e]}, {Oacc[4 * b + 2 * e]}, {Oacc[4 * b + 2 * e + 1]}")
    ost = store_pairs(pk8, WS_O)
    V.free(accq, acck, accv, Qp, Kp, Vp, vPar, vMs, selS, selP, lg, mx, mt, Pz, Ps, Pp)
    stamp("attn")

    acc3 = [[V.alloc(16, f"acc3{p}{nb}") for nb in range(2)] for p in range(2)]
    barrier(vm=w3d[1][3][1]["t"])
    WOS = [L[0], L[5], L[3], L[4]]
    wod = [dma_chunk("wo", vWB, so_small(q), WOS[q]) for q in range(4)]
    run(wod[0][0])
    sCB = S.alloc(1, "cs base")
    steps = []
    for p in range(2):
        for hh in range(2):
            rd, pp = w_reads(vB3, sCB, 1024)

            def sel(p=p, hh=hh):
                A(f"s_mov_b32 {sCB}, {W3S[p][0] + hh * 8192}")
                for c in range(1, 4):
                    A(f"s_cmp_eq_u32 {sW}, {c}")
                    A(f"s_cselect_b32 {sCB}, {W3S[p][c] + hh * 8192}, {sCB}")
            mf = []
            for T in range(4):
                for nb in range(2):
                    d = acc3[p][nb]
                    mf.append(f"{M32} {d}, {vOnes}, {wfr[pp][(T * 2 + nb) * 4:(T * 2 + nb) * 4 + 4]}, {0 if (T == 0 and hh == 0) else d}")
            steps.append(dict(reads=[sel] + rd, mfma=mf))
    run_steps(steps, 3)
    S.free(sCB)
    A(f"v_lshlrev_b32 {vT0}, 2, {vM32}")
    A("s_mov_b32 exec_hi, 0")
    for p in range(2):
        for nb in range(2):
            A(f"ds_add_f32 {vT0}, {acc3[p][nb][0]} offset:{CS3 + (p * 2 + nb) * 128}")
    A("s_mov_b32 exec_hi, -1")
    A.wait(vm=ost)
    flag_set(off_ho(FL_O))
    stamp("cs3")

    def off_x1_poll():
        A(f"s_lshl_b32 {sT0}, {sW}, 6")
        A(f"s_add_u32 {sT0}, {sT0}, {FL_X1}")
    poll(off_x1_poll, vI16)
    stamp("x1polled")
    sM3 = S.alloc(1, "mb32 p3")
    A(f"s_lshl_b32 {sM3}, {sCL}, 2")
    A(f"s_add_u32 {sM3}, {sM3}, {sW}")

    def so_x1(i):
        def f():
            A(f"s_lshl_b32 {sT0}, {sCL}, 2")
            A(f"s_add_u32 {sT0}, {sT0}, {i}")
            A(f"s_and_b32 {sT0}, {sT0}, 7")
            A(f"s_lshl_b32 {sT1}, {sM3}, 3")
            A(f"s_add_u32 {sT0}, {sT0}, {sT1}")
            A(f"s_lshl_b32 {sT0}, {sT0}, 12")
            A(f"s_add_u32 {sAO}, {sT0}, {WS_X1}")
        return f
    x1l = [act_loads(actB[16 * i:16 * i + 16], so_x1(i)) for i in range(8)]
    stv = V.alloc(16, "stat partials")

    def so_st():
        A(f"s_lshl_b32 {sT0}, {sM3}, 12")
        A(f"s_add_u32 {sAO}, {sT0}, {WS_ST}")
    stl = act_loads(stv, so_st)
    for i in range(3):
        run(x1l[i])
    vK = V.alloc(4, "mean,k0,k1,ir")
    csb = V.alloc(16, "cs buf")
    g3t = V.alloc(16, "gelu tmp")
    vH2o = V.alloc(1, "h2 voff")
    A(f"s_cmp_lt_u32 {sLI}, 14")
    A(f"s_cselect_b32 {sT0}, 0, {OOB}")
    A(f"v_add_u32 {vH2o}, {sT0}, {vL16}")

    def x1_stats():
        for i in range(1, 4):
            for e in range(2):
                A(f"v_pk_add_f32 {stv[2 * e:2 * e + 2]}, {stv[2 * e:2 * e + 2]}, {stv[4 * i + 2 * e:4 * i + 2 * e + 2]}")
        A(f"s_lshl_b32 {sT0}, {sW}, 10")
        A(f"s_add_u32 {sT0}, {sT0}, {STX}")
        A(f"v_add_u32 {vT0}, {sT0}, {vL16}")
        A(f"ds_write_b128 {vT0}, {stv[0:4]}")
        A(f"v_lshl_add_u32 {vT1}, {vM32}, 2, {sT0}")
        A.wait(lg=A.lg_issued)
        for g in range(4):
            A(f"ds_read2_b32 {stv[4 + 2 * g:6 + 2 * g]}, {vT1} offset0:{g * 64} offset1:{g * 64 + 32}")
        A(f"v_pk_add_f32 {stv[0:2]}, {stv[4:6]}, {stv[6:8]}")
        A(f"v_pk_add_f32 {stv[2:4]}, {stv[8:10]}, {stv[10:12]}")
        A(f"v_pk_add_f32 {stv[0:2]}, {stv[0:2]}, {stv[2:4]}")
        A(f"v_mul_f32 {vK[0]}, {f2u(1 / 512)}, {stv[0]}")
        A(f"v_mul_f32 {stv[1]}, {f2u(1 / 512)}, {stv[1]}")
        A(f"v_fma_f32 {stv[1]}, -{vK[0]}, {vK[0]}, {stv[1]}")
        A(f"v_max_f32 {stv[1]}, 0, {stv[1]}")
        A(f"v_add_f32 {stv[1]}, {f2u(EPS)}, {stv[1]}")
        A(f"v_rsq_f32 {stv[2]}, {stv[1]}")
        A(f"v_mul_f32 {vK[1]}, {sC[0]}, {stv[2]}")
        A(f"v_mul_f32 {stv[3]}, {stv[2]}, {stv[2]}")
        A(f"v_mul_f32 {stv[3]}, {stv[3]}, {stv[2]}")
        A(f"v_mul_f32 {vK[2]}, {sC[1]}, {stv[3]}")
        A(f"v_mul_f32 {vK[3]}, {stv[1]}, {stv[2]}")

    def gelu3(p):
        A(f"v_lshlrev_b32 {vT0}, 4, {vHalf}")
        A(f"s_mul_i32 {sT0}, {sM3}, 14")
        A(f"s_add_u32 {sT0}, {sT0}, {sTILE}")
        A(f"s_lshl_b32 {sT0}, {sT0}, 13")
        A(f"s_add_u32 {sAO}, {sT0}, {WS_H2 + p * 4096}")
        tok = None
        for nb in range(2):
            for q in range(4):
                A(f"ds_read_b128 {csb[4 * q:4 * q + 4]}, {vT0} offset:{CS3 + (p * 2 + nb) * 128 + q * 32}")
            d = acc3[p][nb]
            u = lambda i: d[2 * i:2 * i + 2]
            g_ = lambda i: g3t[2 * i:2 * i + 2]
            for i in range(8):
                A(f"v_pk_fma_f32 {u(i)}, {csb[2 * i:2 * i + 2]}, {vK[0:2]}, {u(i)} op_sel_hi:[1,0,1] neg_lo:[0,1,0] neg_hi:[0,1,0]")
            for i in range(8):
                A(f"v_pk_mul_f32 {g_(i)}, {u(i)}, {u(i)}")
            for i in range(8):
                A(f"v_pk_fma_f32 {g_(i)}, {g_(i)}, {vK[2:4]}, {vK[0:2]} op_sel:[0,0,1] op_sel_hi:[1,0,1]")
            for i in range(8):
                A(f"v_pk_mul_f32 {g_(i)}, {g_(i)}, {u(i)}")
            for i in range(16):
                A(f"v_exp_f32 {g3t[i]}, {g3t[i]}")
            for i in range(8):
                A(f"v_pk_fma_f32 {g_(i)}, {g_(i)}, {vK[2:4]}, {vK[2:4]} op_sel:[0,1,1] op_sel_hi:[1,1,1]")
            for i in range(16):
                A(f"v_rcp_f32 {g3t[i]}, {g3t[i]}")
            for i in range(8):
                A(f"v_pk_mul_f32 {g_(i)}, {g_(i)}, {u(i)}")
            for i in range(8):
                A(f"v_cvt_pk_bf16_f32 {d[i]}, {g3t[2 * i]}, {g3t[2 * i + 1]}")
            for c in range(2):
                tok = A(f"buffer_store_dwordx4 {d[4 * c:4 * c + 4]}, {vH2o}, {srd['ws']}, {sAO} offen offset:{(nb * 2 + c) * 1024}{ST}")
        return tok

    def off_h2(p):
        def f():
            A(f"s_lshl_b32 {sT0}, {sW}, 4")
            A(f"s_add_u32 {sT0}, {sT0}, {sLI}")
            A(f"s_lshl_b32 {sT0}, {sT0}, 2")
            A(f"s_add_u32 {sT0}, {sT0}, {FL_H2 + p * 256}")
        return f

    W4S = [L[6], L[7], L[1], L[2], L[8], L[0], L[5], L[3], L[4]]
    w4d = [dma_chunk("w4", vWB, so_w4(q), W4S[q % 9]) for q in range(14)]
    h2tok = [None, None]
    for p in range(2):
        steps = []
        for i in range(8):
            rd, pp = w_reads(vB3, W3S[p][i // 2] + (i % 2) * 8192, 1024)
            stp = dict(reads=rd, mfma=stage_mfma(pp, acc3[p], actB[16 * i:16 * i + 16], zero=(i == 0, i == 0)))
            if p == 0:
                if i + 3 < 8:
                    stp["bg"] = lambda i=i: x1l[i + 3]
                if i == 5:
                    stp["bg"] = lambda: stl
            else:
                if i < 3:
                    stp["bg"] = lambda i=i: wod[i + 1][0]
                if i == 3:
                    stp["bg"] = lambda: w4d[0][0]
                if i == 5:
                    def pub():
                        A.wait(vm=h2tok[0])
                        flag_set(off_h2(0))
                    stp["bg"] = lambda: [pub]
            if i == 7:
                stp["last"] = lambda: barrier()
            steps.append(stp)
        run_steps(steps, 3)
        stamp(f"p3mm{p}")
        if p == 0:
            x1_stats()
        else:
            for q in range(1, 5):
                run(w4d[q][0])
        h2tok[p] = gelu3(p)
        stamp(f"gelu{p}")
    V.free(acc3, stv, vK, csb, g3t, vH2o, vW3, vB3)

    poll(off_ho_poll(FL_O), vI16)
    flag_set(off_h2(1))
    for q in range(4):
        run(act_loads(actA[16 * q:16 * q + 16], so_act_small(WS_O, q)))

    def so_h2(q):
        def f():
            rot7(q, sT0)
            A(f"s_lshl_b32 {sT1}, {sMB}, 1")
            A(f"s_add_u32 {sT1}, {sT1}, {sKH}")
            A(f"s_mul_i32 {sT1}, {sT1}, 7")
            A(f"s_add_u32 {sT0}, {sT0}, {sT1}")
            A(f"s_lshl_b32 {sT0}, {sT0}, 13")
            A(f"s_add_u32 {sAO}, {sT0}, {WS_H2 + (q // 7) * 4096}")
        return f

    def off_h2_poll(p):
        def f():
            A(f"s_and_b32 {sT0}, {sMB}, 3")
            A(f"s_lshl_b32 {sT0}, {sT0}, 6")
            A(f"s_mul_i32 {sT1}, {sKH}, 28")
            A(f"s_add_u32 {sT0}, {sT0}, {sT1}")
            A(f"s_add_u32 {sT0}, {sT0}, {FL_H2 + p * 256}")
        return f
    h2buf = lambda q: actB[16 * (q % 8):16 * (q % 8) + 16]
    h2l = [act_loads(h2buf(q), so_h2(q)) for q in range(14)]
    poll(off_h2_poll(0), vI7)
    stamp("opolled")
    steps = []
    for q in range(4):
        rd, pp = w_reads(vBN, WOS[q], 512)
        stp = dict(reads=rd, mfma=stage_mfma(pp, acc, actA[16 * q:16 * q + 16], zero=(False, q == 0)))
        if q == 0:
            stp["pre"] = lambda: barrier(vm=w4d[4][1]["t"])
        stp["bg"] = lambda q=q: h2l[q]
        steps.append(stp)
    for q in range(14):
        rd, pp = w_reads(vBP, W4S[q % 9], 1024)
        stp = dict(reads=rd, mfma=stage_mfma(pp, acc, h2buf(q)))

        def pre(q=q):
            barrier(vm=w4d[q][1]["t"])
            if q == 0:
                stamp("wo")
            if q == 4:
                poll(off_h2_poll(1), vI7)
        stp["pre"] = pre

        def bg(q=q):
            o = []
            if q < 5:
                o += w4d[q + 5][0] if q < 4 else w4d[9][0]
            elif q + 5 < 14:
                o += w4d[q + 5][0]
            if q + 4 < 14:
                o += h2l[q + 4]
            return o
        stp["bg"] = bg
        steps.append(stp)
    run_steps(steps, 3)
    stamp("p4mm")

    exchange(W4S[5])
    for i in range(8):
        A(f"v_cvt_pk_bf16_f32 {pk8[i]}, {acc[0][2 * i]}, {acc[0][2 * i + 1]}")
    for c in range(2):
        A(f"v_permlane32_swap_b32 {pk8[4 * c]}, {pk8[4 * c + 2]}")
        A(f"v_permlane32_swap_b32 {pk8[4 * c + 1]}, {pk8[4 * c + 3]}")
    A(f"v_lshlrev_b32 {vT0}, 10, {vM32}")
    A(f"v_lshl_add_u32 {vT0}, {vHalf}, 4, {vT0}")
    A(f"s_lshl_b32 {sT0}, {sMB}, 15")
    A(f"s_lshl_b32 {sT1}, {sJ}, 7")
    A(f"s_add_u32 {sT0}, {sT0}, {sT1}")
    A(f"s_lshl_b32 {sT1}, {sKH}, 6")
    A(f"s_add_u32 {sT0}, {sT0}, {sT1}")
    for c in range(2):
        A(f"buffer_store_dwordx4 {pk8[4 * c:4 * c + 4]}, {vT0}, {srd['out']}, {sT0} offen offset:{c * 32}")
    if opt.get("stamps"):
        A.wait_all()
        stamp("end")
        A(f"s_lshl_b32 {sT0}, s2, 2")
        A(f"s_add_u32 {sT0}, {sT0}, {sW}")
        A(f"s_lshl_b32 {sT0}, {sT0}, 8")
        A(f"s_add_u32 {sT0}, {sT0}, {WS_TS}")
        A(f"v_lshlrev_b32 {vT0}, 2, {vL}")
        A(f"buffer_store_dword {vTS}, {vT0}, {srd['ws']}, {sT0} offen")
    A.label("L_END")
    A("s_endpgm")
    A.label("L_CODE_END")
    nops = A.pad_hazards()
    info = dict(nops=nops, autowaits=A.autowaits, n=len([i for i in A.ins if i.op]), vhigh=V.high, ahigh=AG.high, shigh=S.high, stamps=stamps)
    return A, info


HEADER = """; Fused persistent kernel (generated by dev/gen.py).
; @launch grid=(256,1,1) block=(256,1,1) lds=%d
.amdgcn_target "amdgcn-amd-amdhsa--gfx950"
.text
.globl %s
.p2align 8
.type %s,@function
%s:
"""
FOOTER = """
.section .rodata,"a"
.p2align 6
.amdhsa_kernel %s
  .amdhsa_next_free_vgpr 512
  .amdhsa_next_free_sgpr 102
  .amdhsa_accum_offset 256
  .amdhsa_group_segment_fixed_size 0
  .amdhsa_kernarg_size 88
  .amdhsa_user_sgpr_count 2
  .amdhsa_user_sgpr_kernarg_segment_ptr 1
  .amdhsa_system_sgpr_workgroup_id_x 1
.end_amdhsa_kernel
"""


def emit(path, opt):
    A, info = build(opt)
    with open(path, "w") as f:
        f.write(HEADER % (LDS_BYTES, KNAME, KNAME, KNAME))
        f.write(A.text())
        f.write(FOOTER % KNAME)
    return info


if __name__ == "__main__":
    import json
    opt = {}
    path = sys.argv[1]
    for a in sys.argv[2:]:
        k, _, v = a.partition("=")
        opt[k] = json.loads(v) if v else True
    info = emit(path, opt)
    print(info)
    if info["stamps"]:
        json.dump(info["stamps"], open(path + ".stamps.json", "w"))
```

```python
import re


class R:
    def __init__(self, kind, base, n=1):
        self.kind, self.base, self.n = kind, base, n

    def __getitem__(self, i):
        if isinstance(i, slice):
            st = i.start or 0
            en = self.n if i.stop is None else i.stop
            assert 0 <= st < en <= self.n, (st, en, self.n)
            return R(self.kind, self.base + st, en - st)
        assert 0 <= i < self.n, (i, self.n)
        return R(self.kind, self.base + i, 1)

    def sub(self, st, n):
        return self[st:st + n]

    def __str__(self):
        if self.n == 1:
            return f"{self.kind}{self.base}"
        return f"{self.kind}[{self.base}:{self.base + self.n - 1}]"

    __repr__ = __str__

    def regs(self):
        return [(self.kind, self.base + i) for i in range(self.n)]


class Quads:
    def __init__(self, qs):
        self.qs = qs

    def __getitem__(self, i):
        if isinstance(i, slice):
            assert i.start // 4 == (i.stop - 1) // 4
            return self.qs[i.start // 4][i.start % 4:i.start % 4 + i.stop - i.start]
        return self.qs[i // 4][i % 4]


class Pool:
    def __init__(self, kind, lo, hi):
        self.kind, self.lo, self.hi = kind, lo, hi
        self.used = {}
        self.high = lo

    def alloc(self, n, name="", align=None):
        if align is None:
            align = 1 if n == 1 else (2 if n < 4 else 4)
        b = (self.lo + align - 1) // align * align
        while b + n <= self.hi:
            if all((b + i) not in self.used for i in range(n)):
                for i in range(n):
                    self.used[b + i] = name
                self.high = max(self.high, b + n)
                return R(self.kind, b, n)
            b += align
        import collections
        cnt = collections.Counter(self.used.values())
        raise RuntimeError(f"out of {self.kind} regs for {name} ({n}); used={len(self.used)} {dict(cnt)}")

    def quads(self, n, name=""):
        return Quads([self.alloc(4, name) for _ in range(n // 4)])

    def free(self, *rs):
        for r in rs:
            if isinstance(r, (list, tuple)):
                self.free(*r)
                continue
            if isinstance(r, Quads):
                self.free(*r.qs)
                continue
            for i in range(r.n):
                del self.used[r.base + i]


_REG = re.compile(r"^(-?)(?:abs\()?([vas])(\d+|\[(\d+):(\d+)\])\)?$")
TRANS = ("v_exp_f32", "v_log_f32", "v_rcp_f32", "v_rsq_f32", "v_sqrt_f32", "v_sin_f32", "v_cos_f32")


def parse_operand(tok):
    tok = tok.strip()
    if tok == "vcc":
        return [("s", 106), ("s", 107)]
    if tok == "exec":
        return [("s", 126), ("s", 127)]
    if tok in ("vcc_lo", "vcc_hi", "exec_lo", "exec_hi"):
        return [("s", {"vcc_lo": 106, "vcc_hi": 107, "exec_lo": 126, "exec_hi": 127}[tok])]
    if tok == "m0":
        return [("s", 124)]
    m = _REG.match(tok)
    if not m:
        return []
    k = m.group(2)
    if m.group(4) is not None:
        return [(k, i) for i in range(int(m.group(4)), int(m.group(5)) + 1)]
    return [(k, int(m.group(3)))]


class Ins:
    def __init__(self, text):
        self.text = text
        t = text.split(";")[0].strip()
        self.label = t.endswith(":")
        self.directive = t.startswith(".")
        self.op = "" if (self.label or self.directive or not t) else t.split()[0]
        self.defs, self.uses = set(), set()
        self.cls = "other"
        self.passes = 0
        self.srcC = set()
        self.srcAB = set()
        self.stdata = set()
        self.block = None
        if not self.op:
            return
        rest = t[len(self.op):].strip()
        toks, depth, cur = [], 0, ""
        for ch in rest:
            if ch == "[" or ch == "(":
                depth += 1
            if ch == "]" or ch == ")":
                depth -= 1
            if ch == "," and depth == 0:
                toks.append(cur.strip())
                cur = ""
            else:
                cur += ch
        if cur.strip():
            toks.append(cur.strip())
        mods = ""
        if toks:
            last = toks[-1].split(None, 1)
            toks[-1] = last[0]
            mods = last[1] if len(last) > 1 else ""
        self.mods = mods
        ops = [parse_operand(x) for x in toks]
        op = self.op
        base = re.sub(r"_(e32|e64|dpp|sdwa)$", "", op)
        self.base = base
        self.dpp = op.endswith("_dpp") or "row_" in mods or "quad_perm" in mods
        if op.startswith("v_mfma"):
            self.cls = "mfma"
            self.passes = 8 if "32x32" in op else 4
            self.defs = set(ops[0])
            self.srcAB = set(ops[1]) | set(ops[2])
            self.srcC = set(ops[3])
            self.uses = self.srcAB | self.srcC
        elif op.startswith("v_"):
            self.cls = "valu"
            if base.startswith("v_cmp"):
                self.defs = set(ops[0])
                self.uses = set().union(*ops[1:])
            elif base in ("v_permlane16_swap_b32", "v_permlane32_swap_b32", "v_swap_b32"):
                self.defs = set(ops[0]) | set(ops[1])
                self.uses = set(self.defs)
            elif base in ("v_add_co_u32", "v_sub_co_u32", "v_addc_co_u32"):
                self.defs = set(ops[0]) | set(ops[1])
                self.uses = set().union(*ops[2:])
            else:
                self.defs = set(ops[0])
                self.uses = set().union(*ops[1:]) if len(ops) > 1 else set()
                if base in ("v_fmac_f32", "v_dot2c_f32_bf16", "v_writelane_b32") or self.dpp:
                    self.uses |= set(ops[0])
            self.trans = base in TRANS
            self.dot = base.startswith("v_dot")
        elif op.startswith("ds_"):
            self.cls = "ds"
            if base.startswith("ds_read") or base.startswith("ds_bpermute") or base.startswith("ds_swizzle"):
                self.defs = set(ops[0])
                self.uses = set().union(*ops[1:])
            else:
                self.uses = set().union(*ops)
        elif op.startswith("buffer_") or op.startswith("global_"):
            self.cls = "vmem"
            self.lds = " lds" in (" " + mods) or "load_lds" in op
            if op in ("buffer_wbl2", "buffer_inv"):
                pass
            elif "load" in op and self.lds:
                self.uses = set().union(*ops) | {("s", 124)}
            elif "load" in op:
                self.defs = set(ops[0])
                self.uses = set().union(*ops[1:])
            else:
                self.uses = set().union(*ops)
                data = ops[0] if op.startswith("buffer_") else ops[1]
                if len(data) >= 3:
                    self.stdata = set(data)
                if "atomic" in op and "sc0" in mods:
                    self.defs = set(ops[0])
        elif op.startswith("s_"):
            self.cls = "salu"
            if op.startswith("s_load") or op.startswith("s_memtime") or op.startswith("s_memrealtime"):
                self.cls = "smem"
                self.defs = set(ops[0])
                self.uses = set().union(*ops[1:]) if len(ops) > 1 else set()
            elif op.startswith("s_cmp") or op.startswith("s_cbranch") or op.startswith("s_bitcmp") or \
                    op in ("s_branch", "s_barrier", "s_waitcnt", "s_nop", "s_endpgm", "s_sleep", "s_setprio", "s_setpc_b64"):
                self.uses = set().union(*ops) if ops else set()
            else:
                self.defs = set(ops[0]) if ops else set()
                self.uses = set().union(*ops[1:]) if len(ops) > 1 else set()
                if op in ("s_addk_i32", "s_mulk_i32"):
                    self.uses |= self.defs
                if "saveexec" in op:
                    self.defs |= {("s", 126), ("s", 127)}

    def states(self):
        if self.op == "s_nop":
            return int(self.text.split(";")[0].split()[1], 0) + 1
        return 1 if self.op else 0


def vec(rs):
    return {r for r in rs if r[0] in "va"}


def sca(rs):
    return {r for r in rs if r[0] == "s"}


def required_gap(p, c):
    need = 0
    if p.cls == "valu":
        pv, ps = vec(p.defs), sca(p.defs)
        if c.cls == "mfma" and pv & c.uses:
            need = max(need, 3 if p.dot else 2)
        if c.cls == "valu":
            if p.trans and not c.trans and pv & c.uses:
                need = max(need, 1)
            if p.trans and c.trans and pv & c.uses:
                need = max(need, 1)
            if c.dpp and pv & c.uses:
                need = max(need, 2)
            if c.base.startswith("v_permlane") and pv & c.uses:
                need = max(need, 2)
            if c.base in ("v_readfirstlane_b32", "v_readlane_b32") and pv & c.uses:
                need = max(need, 1)
            if ps & c.uses:
                need = max(need, 4 if c.base in ("v_readlane_b32", "v_writelane_b32") else 2)
            if p.dot and (pv & (c.uses | c.defs)):
                same_acc = c.base == p.base and c.defs == p.defs
                if not same_acc:
                    need = max(need, 3)
            if ("sdwa" in p.op or "op_sel:" in p.mods and not p.base.startswith("v_pk")) and pv & c.uses:
                need = max(need, 1)
        if p.dot and c.cls in ("ds", "vmem") and pv & c.uses:
            need = max(need, 3)
        if p.trans and c.cls in ("ds", "vmem") and pv & c.uses:
            need = max(need, 1)
        if c.cls == "vmem" and ps & c.uses:
            need = max(need, 5)
        if c.cls in ("salu", "smem") and ps & c.uses:
            need = max(need, 4)
    if p.cls == "mfma":
        long_ = 12 if p.passes == 8 else 8
        if c.cls == "mfma":
            if p.defs & c.srcAB:
                need = max(need, long_)
            if p.defs & c.srcC:
                if not (c.srcC == p.defs and c.passes == p.passes):
                    need = max(need, 10 if p.passes == 8 else 6)
            elif p.defs & c.defs:
                need = max(need, 10 if p.passes == 8 else 6)
        elif c.cls in ("valu", "ds", "vmem"):
            if p.defs & (c.uses | c.defs):
                need = max(need, long_)
            if c.cls == "valu" and (p.srcC & c.defs):
                need = max(need, 7 if p.passes == 8 else 3)
    if p.cls == "salu" and ("s", 124) in p.defs and c.cls == "vmem" and getattr(c, "lds", False):
        need = max(need, 1)
    if p.cls == "vmem" and p.stdata and (p.stdata & c.defs):
        need = max(need, 2 if c.cls in ("valu", "mfma") else 1)
    return need


class BgItem:
    def __init__(self, fn):
        self.fn = fn
        self.tok = None
        self.dl = 0


class Asm:
    def __init__(self):
        self.ins = []
        self.v = Pool("v", 1, 256)
        self.a = Pool("a", 0, 256)
        self.s = Pool("s", 3, 102)
        self.vm_issued = 0
        self.vm_done = 0
        self.lg_issued = 0
        self.lg_done = 0
        self.pend = {}
        self.nlabel = 0
        self.autowaits = 0
        self.cur_block = None
        self.nblock = 0
        self.t = 0
        self.mfma_free = 0
        self.bgq = []
        self.bg_next = 0
        self.bg_gap = 64
        self.bg_lock = 0
        self.in_bg = False
        self.topup = 10
        self.bg_limit = 1 << 30
        self.ool = []

    def cond_begin(self):
        self.nblock += 1
        self.cur_block = self.nblock
        self._blk_start = len(self.ins)

    def cond_end(self):
        for i in self.ins[self._blk_start:]:
            i.block = self.cur_block
        self.cur_block = None

    def enqueue(self, items, dl=None):
        groups = []
        for it in items:
            if getattr(it, "cont", False) and groups:
                groups[-1].append(it)
            else:
                groups.append([it])
        for g in groups:
            d = dl if dl is not None else g[0].dl
            for it in g:
                it.dl = d
            k = len(self.bgq)
            while k > 0 and self.bgq[k - 1].dl > d:
                k -= 1
            while k < len(self.bgq) and getattr(self.bgq[k], "cont", False):
                k += 1
            self.bgq[k:k] = g

    def bg_close_group(self):
        while self.bgq and getattr(self.bgq[0], "cont", False):
            self.bg_emit()

    def bg_emit(self):
        it = self.bgq.pop(0)
        self.in_bg = True
        it.tok = it.fn()
        self.in_bg = False
        self.bg_next = self.t + self.bg_gap - 8

    def bg_flush(self, upto=None):
        while self.bgq and (upto is None or upto.tok is None):
            self.bg_emit()

    def lock(self):
        self.bg_lock += 1

    def unlock(self):
        self.bg_lock -= 1

    def cost(self, i):
        if i.cls == "mfma":
            return 8
        if i.cls == "ds":
            return 6
        if i.cls == "vmem":
            return 12
        if i.cls == "valu" and (i.trans or i.base.startswith("v_permlane")):
            return 8
        if i.op == "s_nop":
            return 4 * i.states()
        return 4

    def tick(self, i):
        if i.cls == "mfma":
            self.t = max(self.t, self.mfma_free)
            self.mfma_free = self.t + 4 * i.passes
        elif i.cls == "valu" and (i.dot or i.base.startswith("v_pk")):
            self.t = max(self.t, self.mfma_free)
        self.t += self.cost(i)

    def raw(self, text):
        self.ins.append(Ins(text))

    def label(self, name):
        self.raw(f"{name}:")

    def newlabel(self, stem="L"):
        self.nlabel += 1
        return f"{stem}_{self.nlabel}"

    def comment(self, t):
        self.raw(f"; {t}")

    def __call__(self, text, count=True, nodef=False):
        i = Ins(text)
        if nodef:
            i.defs = set()
        needvm = needlg = 0
        for r in (i.uses | i.defs):
            p = self.pend.get(r)
            if p:
                if p[0] == "vm" and p[1] > self.vm_done:
                    needvm = max(needvm, p[1])
                if p[0] == "lg" and p[1] > self.lg_done:
                    needlg = max(needlg, p[1])
        if needvm or needlg:
            self.autowaits += 1
            self.wait(vm=needvm or None, lg=needlg or None)
        self.ins.append(i)
        self.tick(i)
        tok = None
        if i.cls == "vmem" and count:
            self.vm_issued += 1
            tok = ("vm", self.vm_issued)
            for r in i.defs:
                self.pend[r] = tok
        elif i.cls == "vmem":
            assert not i.defs, "uncounted VMEM op must not define registers"
        elif i.cls == "ds":
            self.lg_issued += 1
            tok = ("lg", self.lg_issued)
            for r in i.defs:
                self.pend[r] = tok
        if i.cls == "vmem" and not self.in_bg:
            self.bg_next = max(self.bg_next, self.t + self.bg_gap - 8)
        if self.bgq and not self.in_bg and not self.bg_lock and self.cur_block is None and self.t >= self.bg_next and self.vm_issued < self.bg_limit \
                and not (i.op.startswith("s_cmp") or i.op.startswith("s_bitcmp")):
            self.bg_emit()
        return tok

    def wait(self, vm=None, lg=None):
        parts = []
        if isinstance(vm, BgItem):
            assert not self.in_bg
            if vm.tok is None:
                assert not self.bg_lock and vm in self.bgq, "waiting on an item that was never queued"
                self.bg_flush(vm)
            vm = vm.tok
        if isinstance(vm, tuple):
            vm = vm[1]
        if vm is not None and vm > self.vm_done and not self.in_bg and not self.bg_lock and self.cur_block is None:
            while self.bgq and self.vm_issued - vm < self.topup:
                self.bg_emit()
        if isinstance(vm, tuple):
            vm = vm[1]
        if isinstance(lg, tuple):
            lg = lg[1]
        if vm is not None and vm > self.vm_done:
            n = min(self.vm_issued - vm, 63)
            parts.append(f"vmcnt({n})")
            self.vm_done = self.vm_issued - n
        if lg is not None and lg > self.lg_done:
            n = min(self.lg_issued - lg, 15)
            parts.append(f"lgkmcnt({n})")
            self.lg_done = self.lg_issued - n
        if parts:
            self.ins.append(Ins("s_waitcnt " + " ".join(parts)))
            self.t += 4

    def wait_all(self, vm=True, lg=True, force=False):
        parts = []
        if vm and (force or self.vm_done < self.vm_issued):
            parts.append("vmcnt(0)")
            self.vm_done = self.vm_issued
        if lg and (force or self.lg_done < self.lg_issued):
            parts.append("lgkmcnt(0)")
            self.lg_done = self.lg_issued
        if parts:
            self.ins.append(Ins("s_waitcnt " + " ".join(parts)))

    def vmtok(self):
        return ("vm", self.vm_issued)

    def lgtok(self):
        return ("lg", self.lg_issued)

    def pad_hazards(self):
        out = []
        nops = 0
        for c in self.ins:
            if c.op:
                need = 0
                dist = 0
                for p in reversed(out):
                    if dist >= 20:
                        break
                    if p.op:
                        g = required_gap(p, c)
                        if g > dist:
                            need = max(need, g - dist)
                        if p.block is None or p.block == c.block:
                            dist += p.states()
                while need > 0:
                    k = min(need, 16)
                    n_ = Ins(f"s_nop {k - 1}")
                    n_.block = c.block
                    out.append(n_)
                    nops += 1
                    need -= k
            out.append(c)
        self.ins = out
        return nops

    def text(self):
        lines = []
        for i in self.ins:
            if i.label or i.directive:
                lines.append(i.text)
            else:
                lines.append("    " + i.text)
        return "\n".join(lines)


def align_pass(A, header, footer, minrun=4):
    import subprocess, tempfile, os
    d = tempfile.mkdtemp()
    src, obj = os.path.join(d, "a.s"), os.path.join(d, "a.o")
    open(src, "w").write(header + A.text() + footer)
    r = subprocess.run(["clang", "-x", "assembler", "-target", "amdgcn-amd-amdhsa", "-mcpu=gfx950", "-c", src, "-o", obj], capture_output=True, text=True)
    assert r.returncode == 0, r.stderr
    out = subprocess.run(["llvm-objdump", "-d", "--mcpu=gfx950", obj], capture_output=True, text=True).stdout
    sizes = []
    for line in out.splitlines():
        m = re.search(r"//\s*[0-9A-F]+:\s*((?:[0-9A-F]{8}\s*)+)", line)
        if m:
            sizes.append(4 * len(m.group(1).split()))
    real = [i for i in A.ins if i.op]
    assert len(sizes) == len(real), (len(sizes), len(real))
    for i, z in zip(real, sizes):
        i.size = z

    def widen(i):
        if i.cls == "valu" and i.base not in ("v_readfirstlane_b32",) and not i.op.endswith(("_e64", "_dpp", "_sdwa")):
            t = i.text.replace(i.op, i.base + "_e64", 1)
            return t
        return None

    res = []
    off = 0
    stats = dict(widened=0, split=0, padded=0, left=0)
    n = len(A.ins)
    for idx, c in enumerate(A.ins):
        if c.op and c.size == 8 and off % 8 == 4:
            fixed = False
            for k in range(len(res) - 1, -1, -1):
                p = res[k]
                if not p.op:
                    continue
                if p.size != 4:
                    break
                t = widen(p)
                if t:
                    q = Ins(t)
                    q.size, q.block = 8, p.block
                    res[k] = q
                    stats["widened"] += 1
                    fixed = True
                    break
                if p.op == "s_nop" and p.states() >= 2:
                    q1, q2 = Ins(f"s_nop {p.states() - 2}"), Ins("s_nop 0")
                    q1.size = q2.size = 4
                    res[k:k + 1] = [q1, q2]
                    stats["split"] += 1
                    fixed = True
                    break
            if not fixed:
                run_ = 0
                for q in A.ins[idx:]:
                    if not q.op:
                        continue
                    if q.size != 8:
                        break
                    run_ += 1
                if run_ >= minrun:
                    q = Ins("s_nop 0")
                    q.size = 4
                    res.append(q)
                    stats["padded"] += 1
                    fixed = True
                else:
                    stats["left"] += 1
            if fixed:
                off += 4
        res.append(c)
        if c.op:
            off += c.size
    A.ins = res
    stats["bytes"] = off
    return stats
```

```python
import sys, struct
from collections import deque
from asmlib import *

KNAME = "parallel_sum__sliding_local_dilated__mixer_s_mlp__prompt_kernel"
MB = 1 << 20
WS_H, WS_O, WS_X1, WS_H2, WS_ST, WS_FL, WS_TS, WS_SZ = 0, 2 * MB, 4 * MB, 6 * MB, 13 * MB, 13 * MB + 512 * 1024, 14 * MB, 15 * MB
FL_H, FL_O, FL_X1, FL_H2 = 0, 256, 512, 768
MR, MH, MEAN, RSTD, CS3, STX, CSP = 0, 768, 1536, 1920, 2304, 3328, 7424
XB, XR = 8192, 20480
RING = XB + 4 * XR
QS = 24576
L = [8192 + 16384 * i for i in range(9)]
LDS_BYTES = 163840
OOB = 0x40000000
EPS = 1e-5
LOG2E = 1.4426950408889634
C0 = -2.0 * 0.7978845608028654 * LOG2E
C1 = C0 * 0.044715
M16 = "v_mfma_f32_16x16x32_bf16"
M32 = "v_mfma_f32_32x32x16_bf16"
MA = "v_mfma_f32_16x16x16_bf16"
KARG = dict(x=0, qkv=8, wo=16, w1=32, w2=40, w3=48, w4=56, out=64, dbg=72, ws=80)
SIZE = dict(x=2 * MB, qkv=512 * 3072, wo=512 * 1024, w1=512 * 1024, w2=512 * 1024, w3=512 * 3584, w4=1792 * 1024,
            out=2 * MB, dbg=256, ws=WS_SZ)


def f2u(x):
    return "0x%08x" % struct.unpack("<I", struct.pack("<f", x))[0]


def build(opt):
    A = Asm()
    A.bg_gap = opt.get("gap", 64)
    A.topup = opt.get("topup", 10)
    V, AG, S = A.v, A.a, A.s
    stamps = []
    IDLE = opt.get("idle", 1)

    def stamp(name):
        if not opt.get("stamps") or (opt["stamps"] == "min" and name not in ("start", "end")):
            return
        A.raw(f"s_memtime {sTS}")
        A.raw("s_waitcnt lgkmcnt(0)")
        A.lg_done = A.lg_issued
        A.lock()
        A(f"v_writelane_b32 {vTS}, {sTS[0]}, {len(stamps)}")
        if name in ("start", "end"):
            A.raw(f"s_memrealtime {sTS}")
            A.raw("s_waitcnt lgkmcnt(0)")
            A(f"v_writelane_b32 {vTS}, {sTS[0]}, {62 if name == 'start' else 63}")
        A.unlock()
        stamps.append(f"{name}@{A.t}")

    def do(it):
        if it is not None:
            it() if callable(it) else A(it)

    def run(lst):
        for it in lst:
            do(it)

    def weave(main, side, k, fill=None):
        side = side if isinstance(side, deque) else deque(side)
        acc_k = 0.0
        for m in main:
            if callable(m):
                m()
                continue
            A(m)
            acc_k += k
            while acc_k >= 1:
                acc_k -= 1
                if side:
                    do(side.popleft())
            while fill and A.t + 4 <= A.mfma_free:
                it = fill.popleft()
                if it is None:
                    break
                do(it)
        return side

    def barrier(vm=None):
        A.wait(vm=vm)
        A.wait(lg=A.lg_issued)
        A("s_barrier")

    PLACE = dict(q1="hepi0", q2="hepi2", hpub="qkv4", hiss="qkv10", hchk="qkv12",
                 x1pub="attn2", x1iss="attn3", x1chk="pre3_2", ost="p3a7", opub="g0_4", oiss="p3b4", ochk="p3b6",
                 h2apub="p3b6", h2aiss="g1_1", h2achk="g1_3", h2bpub="s4", h2biss="s7", h2bchk="s8")
    PLACE.update(opt.get("place", {}))
    GAPS = opt.get("gaps", {})
    EV = {}
    fired = set()

    def at(point):
        if point in GAPS:
            A.bg_gap = GAPS[point]
        for name, pt in PLACE.items():
            if pt == point:
                EV[name]()
                fired.add(name)
        if point.rstrip("0123456789") in opt.get("fine", []):
            stamp(point)

    def group(fns, dl):
        items = [BgItem(f) for f in fns]
        for it in items:
            it.dl = dl
        for it in items[1:]:
            it.cont = True
        return items

    def sa(*names):
        return [S.alloc(1, n) for n in names]

    def va(*names):
        return [V.alloc(1, n) for n in names]

    srd = {n: S.alloc(4, "srd_" + n, 4) for n in KARG}
    sRB, sJ, sCL, sLI, sW, sKH, sMH, sTILE, sT0, sT1, sT2, sT3, sTO = sa(*"rb j cl li w kh mh tile t0 t1 t2 t3 timeout".split())
    sFLB, sSO, sAO, sM0W, sR = sa("flagbase", "bg soff", "bg act soff", "w*4096", "r")
    sC = S.alloc(2, "c0c1", 2)
    sTS = S.alloc(2, "ts", 2)
    s64 = S.alloc(2, "tmp64", 2)
    vTS, vL, vM16, vG, vL16, vT0, vT1, vT2, vT3, vPF = va(*"ts l m16 g l16 t0 t1 t2 t3 pf".split())
    vXD = va(*[f"xd{i}" for i in range(5)])
    sXreg = sa(*[f"xreg{n}" for n in range(4)])
    sXk = sa(*[f"xk{n}" for n in range(4)])
    sXW, sRQ, sR2 = sa("XB + w*5120", "qkv rot*256", "w2/wo rot")
    ROTQ, ROT2, ROT3 = opt.get("rotq", 0), opt.get("rot2", 0), opt.get("rot3", 0)
    ROTA, ROT4 = opt.get("rota", 0), opt.get("rot4", 0)

    if opt.get("stamps"):
        A.raw(f"s_memtime {sC}")
    for n in ("x", "w1"):
        A(f"s_load_dwordx2 {srd[n][0:2]}, s[0:1], {KARG[n]}")
    A(f"s_getpc_b64 {s64}")
    A(f"v_lshlrev_b32 {vT0}, 5, v0")
    A("s_cmp_ge_u32 s2, 256")
    A("s_cbranch_scc1 L_END")
    A(f"global_load_dword {vPF}, {vT0}, {s64}", nodef=True)
    A(f"v_lshrrev_b32 {vT1}, 6, v0")
    A(f"s_lshr_b32 {sR}, s2, 3")
    if opt.get("jx"):
        A(f"s_xor_b32 {sR}, {sR}, {opt['jx']}")
    A(f"s_and_b32 {sT1}, s2, 7")
    A(f"v_readfirstlane_b32 {sW}, {vT1}")
    A(f"s_lshr_b32 {sT0}, {sR}, 3")
    A(f"s_lshl2_add_u32 {sRB}, {sT1}, {sT0}")
    if ROTQ:
        A(f"s_lshl_b32 {sRQ}, {sT0}, 8")
        if ROTQ == 2:
            A(f"s_and_b32 {sT2}, {sR}, 7")
            A(f"s_cmp_eq_u32 {sT2}, 3")
            A(f"s_cselect_b32 {sRQ}, {sRQ}, 0")
    A(f"s_add_u32 {sT0}, {sT0}, {sR}")
    A(f"v_and_b32 {vM16}, 15, v0")
    A(f"v_bfe_u32 {vG}, v0, 4, 2")
    A(f"s_and_b32 {sT0}, {sT0}, 3")
    A(f"s_lshl_b32 {sXk[0]}, {sT0}, 8")
    A(f"s_mul_i32 {sT2}, {sW}, 20")
    A(f"s_lshl_b32 {sT3}, {sRB}, 6")
    A(f"s_sub_u32 {sT3}, {sT3}, 14")
    A(f"v_add_u32 {vT2}, {sT2}, {vG}")
    A(f"v_lshlrev_b32 {vT1}, 1, {vT2}")
    A(f"v_bitop3_b32 {vT1}, {vT1}, {vM16}, 15 bitop3:0x28")
    A(f"v_add_lshl_u32 {vT2}, {sT3}, {vT2}, 10")
    A(f"v_lshl_add_u32 {vXD[0]}, {vT1}, 4, {vT2}")
    def xreg(n):
        if ROTQ:
            A(f"s_xor_b32 {sXreg[n]}, {sXk[n]}, {sRQ}")
            A(f"s_mulk_i32 {sXreg[n]}, 80")
        else:
            A(f"s_mul_i32 {sXreg[n]}, {sXk[n]}, 80")
    xreg(0)
    A(f"s_lshl_b32 {sXW}, {sT2}, 8")
    A(f"s_addk_i32 {sXW}, {XB}")
    A(f"s_mov_b32 {srd['x'][3]}, 0x20000")
    A(f"s_lshl_b32 {srd['x'][2]}, {srd['x'][3]}, 4")
    A(f"v_xor_b32 {vT1}, 0x80, {vXD[0]}")
    if opt.get("stamps"):
        A.raw(f"s_memtime {sTS}")
        A(f"v_mov_b32 {vTS}, 0")
    A.raw("s_waitcnt lgkmcnt(0)")
    if opt.get("stamps"):
        A(f"v_writelane_b32 {vTS}, {sC[0]}, 0")
        A(f"v_writelane_b32 {vTS}, {sTS[0]}, 1")
        stamps += ["entry@0", "prewait@0"]
    stamp("start")
    xd = []
    for n in range(4):
        fns = []
        for i in range(5):
            def f(n=n, i=i):
                if i == 0:
                    A(f"s_add_u32 m0, {sXreg[n]}, {sXW}")
                else:
                    A(f"s_addk_i32 m0, 0x400")
                if n == 0 and i:
                    A(f"v_add_u32 {vXD[i]}, {4096 * i}, {vT1 if i % 2 else vXD[0]}")
                return A(f"buffer_load_dwordx4 {vXD[i]}, {srd['x']}, {sXk[n]} offen lds")
            fns.append(f)
        xd.append(group(fns, n))
    A.enqueue(xd[0])
    A.bg_flush()
    for n in KARG:
        if n not in ("x", "w1"):
            A(f"s_load_dwordx2 {srd[n][0:2]}, s[0:1], {KARG[n]}")
    vWB = va(*[f"wb{i}" for i in range(4)])
    vWA1, vWA3, vSB, vR8 = va("wa1", "wa3", "sb16", "l>>3")
    A(f"v_bfe_u32 {vR8}, v0, 3, 3")
    A(f"v_lshlrev_b32 {vT0}, 2, {vG}")
    A(f"v_bitop3_b32 {vT0}, {vT0}, v0, 7 bitop3:0x28")
    A(f"v_lshlrev_b32 {vSB}, 4, {vT0}")
    A(f"s_and_b32 {sJ}, {sR}, 7")
    A(f"s_lshl_b32 {sM0W}, {sW}, 12")
    A(f"s_lshl_b32 {sT1}, {sJ}, 7")
    A(f"s_lshl3_add_u32 {sT0}, {sM0W}, {sT1}")
    A(f"v_lshl_add_u32 {vT0}, {vR8}, 10, {vSB}")
    A(f"v_add_u32 {vWB[0]}, {sT0}, {vT0}")
    A(f"v_xor_b32 {vT1}, 32, {vWB[0]}")
    A(f"v_add_u32 {vWA1}, 7168, {vT1}")
    A(f"v_add_u32 {vWB[2]}, {2 * 7168}, {vWB[0]}")
    A(f"v_add_u32 {vWA3}, {3 * 7168}, {vT1}")
    A(f"s_mov_b32 {srd['w1'][3]}, {srd['x'][3]}")
    A(f"s_lshl_b32 {srd['w1'][2]}, {srd['x'][3]}, 2")

    def dma_chunk(name, voffs, so, slot, dl):
        fns = []
        for i in range(4):
            def f(i=i):
                if i == 0:
                    so()
                    A(f"s_add_u32 m0, {sM0W}, {slot}")
                if name in opt.get("drop", []):
                    return A.vmtok()
                return A(f"buffer_load_dwordx4 {voffs[i]}, {srd[name]}, {sSO} offen offset:{i * 1024} lds")
            fns.append(f)
        return group(fns, dl)

    W1S = [RING + 8192 + 16384 * c for c in range(4)]
    w1d = [dma_chunk("w1", (vWB[0], vWA1, vWB[2], vWA3), (lambda n=n: A(f"s_lshl_b32 {sSO}, {sXk[n]}, 9")), W1S[n], n + 0.5) for n in range(4)]
    A.enqueue(w1d[0])
    A.bg_flush()
    for n in range(1, 4):
        A(f"s_add_u32 {sXk[n]}, {sXk[0]}, {256 * n}")
        A(f"s_and_b32 {sXk[n]}, {sXk[n]}, 0x300")
        xreg(n)
        A.enqueue(xd[n] + w1d[n])
        if n == 1:
            for _ in range(opt.get("cap0", 12) - A.vm_issued):
                A.bg_emit()
            A.bg_limit = A.vm_issued
    stamp("burst")
    A(f"s_lshl2_add_u32 {sT0}, {sR}, {sW}")
    A(f"s_lshl_b32 {sT0}, {sT0}, 8")
    A(f"s_addk_i32 {sT0}, 0x2000")
    A(f"v_and_b32 {vT0}, 1, v0")
    A(f"v_lshl_add_u32 {vT0}, {vT0}, 7, {sT0}")
    A(f"v_min_u32 {vT0}, L_CODE_END-{KNAME}-256, {vT0}")
    A(f"global_load_dword {vPF}, {vT0}, {s64}", nodef=True)
    A(f"v_and_b32 {vL}, 63, v0")
    A(f"v_lshlrev_b32 {vL16}, 4, {vL}")
    A(f"s_lshr_b32 {sCL}, {sRB}, 1")
    A(f"s_and_b32 {sLI}, {sR}, 15")
    A.raw("s_waitcnt lgkmcnt(0)")
    for n in KARG:
        if n not in ("x", "w1"):
            A(f"s_mov_b32 {srd[n][2]}, {SIZE[n]}")
            A(f"s_mov_b32 {srd[n][3]}, {srd['x'][3]}")
    vL0, vOne, vTag, vAr = va("lane0off", "one", "tag", "arr voff")
    vZ4 = V.alloc(4, "zero4")
    sLD, sARO = sa("leader? 0 : OOB", "cleared-word off")
    A(f"v_mov_b64 {vZ4[0:2]}, 0")
    A(f"v_mov_b64 {vZ4[2:4]}, 0")
    A(f"s_lshl_b32 {sFLB}, {sCL}, 11")
    A(f"s_add_u32 {sFLB}, {sFLB}, {WS_FL}")
    A(f"s_cmp_eq_u32 {sLI}, 0")
    A(f"s_cselect_b32 {sLD}, 0, {OOB}")
    A(f"s_lshl_b32 {sT0}, {sW}, 9")
    A(f"s_add_u32 {sT0}, {sT0}, {sFLB}")
    A(f"v_lshl_add_u32 {vT0}, {vL}, 3, {sLD}")
    A(f"buffer_store_dwordx2 {vZ4[0:2]}, {vT0}, {srd['ws']}, {sT0} offen sc1")
    clear_pos = A.vm_issued
    A(f"s_and_b32 {sT0}, {sR}, 16")
    A(f"v_and_b32 {vT0}, 3, {vL}")
    A(f"v_lshl_add_u32 {vAr}, {vT0}, 2, {sT0}")
    A(f"buffer_load_dword {vPF}, {vAr}, {srd['dbg']}, 0 offen sc1", nodef=True)
    A(f"v_min_u32 {vL0}, 1, {vL}")
    A(f"v_lshlrev_b32 {vL0}, 30, {vL0}")
    A(f"v_mov_b32 {vOne}, 1")
    A(f"s_mov_b32 {sTO}, {opt.get('timeout', 200000)}")
    A(f"s_getreg_b32 {sT0}, hwreg(HW_REG_XCC_ID)")
    A(f"s_and_b32 {sT0}, {sT0}, 7")
    A(f"s_and_b32 {sT1}, s2, 7")
    A(f"s_lshl3_add_u32 {sT0}, {sT0}, {sT1}")
    A(f"s_add_u32 {sT0}, {sT0}, 1")
    A(f"s_mul_i32 {sT0}, {sT0}, 0x01010101")
    A(f"v_mov_b32 {vTag}, {sT0}")
    A(f"s_lshl_b32 {sARO}, {sCL}, 2")

    def announce():
        A(f"buffer_store_byte {vTag}, {vL0}, {srd['dbg']}, {sR} offen")

    def announce_cleared():
        A(f"s_cmp_eq_u32 {sW}, 0")
        A(f"s_cselect_b32 {sT2}, {sLD}, {OOB}")
        A(f"v_or_b32 {vT3}, {sT2}, {vL0}")
        A(f"buffer_store_dword {vOne}, {vT3}, {srd['dbg']}, {sARO} offen offset:128 sc1")
        S.free(sLD)

    tch, vTch = [], []
    if opt.get("touch", 1):
        A(f"s_lshl2_add_u32 {sT0}, s2, {sW}")
        for nl in (12, 14, 4):
            vt, = va(f"touch{nl}")
            vTch.append(vt)
            A(f"s_mul_i32 {sT1}, {sT0}, {nl * 128}")
            A(f"v_min_u32 {vT0}, {nl - 1}, {vL}")
            A(f"v_lshl_add_u32 {vt}, {vT0}, 7, {sT1}")
        for nm, vt in (("qkv", vTch[0]), ("w2", vTch[2]), ("w3", vTch[1]), ("wo", vTch[2]), ("w4", vTch[1])):
            if nm in opt.get("notouch", ["w4"] if IDLE else []):
                continue
            fn = lambda nm=nm, vt=vt: A(f"buffer_load_dword {vPF}, {vt}, {srd[nm]}, 0 offen", nodef=True)
            dl = opt.get("touchdl", {}).get(nm, 8)
            if isinstance(dl, str):
                PLACE["t" + nm] = dl
                EV["t" + nm] = fn
            elif dl < 1:
                fn()
            else:
                tch += group([fn], dl)
        A.enqueue(tch)

    vXA = va(*[f"xa{t}" for t in range(4)])
    vXH = va(*[f"xh{t}" for t in range(4)])
    vXS = va(*[f"xs{t}" for t in range(4)])
    vHr, = va("h stat addr")

    def xaddr(dst, rho):
        return [f"v_lshlrev_b32 {vT1}, 1, {rho}",
                f"v_bitop3_b32 {vT1}, {vT1}, {vG}, 15 bitop3:0x28",
                f"v_lshl_add_u32 {vT1}, {rho}, 4, {vT1}",
                f"v_lshlrev_b32 {vT1}, 4, {vT1}",
                f"v_add_u32 {dst[0]}, {XB}, {vT1}"] + [f"v_xor_b32 {dst[t]}, {t * 64}, {dst[0]}" for t in range(1, 4)]

    A(f"s_lshl_b32 {sT0}, {sJ}, 2")
    A(f"s_and_b32 {sT0}, {sT0}, 24")
    A(f"s_lshr_b32 {sT0}, 0x100c0f0d, {sT0}")
    A(f"s_and_b32 {sT0}, {sT0}, 31")
    A(f"v_add_u32 {vT0}, {sT0}, {vM16}")
    A(f"v_lshlrev_b32 {vHr}, 3, {vT0}")
    run(xaddr(vXS, vT0))
    vW1A, vWQA, vTB = va("w1a", "wqa", "tr base")
    A(f"v_and_b32 {vT0}, 3, {vL}")
    A(f"v_lshlrev_b32 {vT0}, 3, {vT0}")
    A(f"v_and_b32 {vT1}, 8, {vL}")
    A(f"v_lshl_add_u32 {vT0}, {vT1}, 3, {vT0}")
    A(f"v_and_b32 {vT1}, 16, {vL}")
    A(f"v_lshl_add_u32 {vT0}, {vT1}, 1, {vT0}")
    A(f"v_and_b32 {vT1}, 12, {vL}")
    A(f"v_lshl_add_u32 {vTB}, {vT1}, 5, {vT0}")
    A(f"s_lshl_b32 {sT0}, {sW}, 5")
    A(f"v_xor_b32 {vT0}, {sT0}, {vTB}")
    A(f"v_lshl_add_u32 {vW1A}, {vG}, 10, {vT0}")
    A(f"v_add_u32 {vW1A}, {W1S[0]}, {vW1A}")
    A(f"v_mul_u32_u24 {vT2}, 3072, {vG}")
    A(f"v_add_u32 {vWQA}, {vT2}, {vT0}")
    A(f"v_add_u32 {vWQA}, {RING}, {vWQA}")
    vOnes = V.alloc(4, "ones")
    A(f"v_mov_b32 {vOnes[0]}, 0x3f803f80")
    A(f"v_mov_b32 {vOnes[1]}, {vOnes[0]}")
    A(f"v_mov_b64 {vOnes[2:4]}, {vOnes[0:2]}")
    A(f"ds_write_b128 {vZ4[0]}, {vZ4} offset:{MR}")
    A(f"ds_write_b64 {vZ4[0]}, {vZ4[0:2]} offset:{MEAN}")
    A(f"ds_write_b64 {vZ4[0]}, {vZ4[0:2]} offset:{RSTD}")
    sacc = V.alloc(10, "stat acc")
    for i in range(5):
        A(f"v_mov_b64 {sacc[2 * i:2 * i + 2]}, 0")
    vWQ = va("wq0", "wq1")
    sQM, sHO = sa("w*6144", "tile off (h/o)")
    A(f"s_lshl_b32 {sT0}, {sW}, 4")
    A(f"v_add_u32 {vT0}, {sT0}, {vR8}")
    A(f"v_mul_u32_u24 {vT0}, 3072, {vT0}")
    A(f"s_lshl_b32 {sT1}, {sJ}, 7")
    A(f"v_add3_u32 {vWQ[0]}, {vT0}, {sT1}, {vSB}")
    A(f"v_xor_b32 {vT1}, 32, {vWQ[0]}")
    A(f"v_add_u32 {vWQ[1]}, {8 * 3072}, {vT1}")
    A(f"s_mul_i32 {sQM}, {sW}, 6144")
    A(f"v_add_u32 {vT0}, 14, {vM16}")
    run(xaddr(vXA, vT0))
    A(f"v_add_u32 {vT0}, 78, {vM16}")
    A(f"v_subrev_u32 {vT2}, 80, {vT0}")
    A(f"v_min_u32 {vT0}, {vT0}, {vT2}")
    run(xaddr(vXH, vT0))
    A(f"s_mov_b32 {sC[0]}, {f2u(C0)}")
    A(f"s_mov_b32 {sC[1]}, {f2u(C1)}")
    A(f"s_lshl4_add_u32 {sT0}, {sRB}, {sJ}")
    A(f"s_lshl2_add_u32 {sT0}, {sT0}, {sW}")
    A(f"s_lshl_b32 {sHO}, {sT0}, 10")
    vF = V.alloc(2, "flagval")
    stamp("setup")

    def run_steps(steps, k, fill=None, depth=1, primed=0, tail=None):
        for d in range(primed, depth):
            if steps[d].get("pre"):
                steps[d]["pre"]()
            run(steps[d]["reads"])
            steps[d]["tok"] = A.lgtok()
        for n, stp in enumerate(steps):
            if not stp.get("nowait"):
                A.wait(lg=stp["tok"])
            side = []
            nx = steps[n + depth] if n + depth < len(steps) else (tail if n + depth == len(steps) else None)
            if nx:
                if nx.get("pre"):
                    nx["pre"]()

                def mark(nx=nx):
                    nx["tok"] = A.lgtok()
                side = list(nx["reads"]) + [mark]
            if stp.get("start"):
                stp["start"]()
            side = weave(stp["mfma"], side, stp.get("k", k), fill)
            if stp.get("post"):
                side = weave(stp["post"], side, 0.5)
            run(side)
            if stp.get("end"):
                stp["end"]()

    sFAST, = sa("fast")

    def flag_set(sreg, imm):
        t = f"buffer_store_dword {vOne}, {vL0}, {srd['ws']}, {sreg} offen offset:{imm}"
        l1, l2 = A.newlabel("SAFE"), A.newlabel("STD")
        A.lock()
        A(f"s_cmp_eq_u32 {sFAST}, 0")
        A(f"s_cbranch_scc1 {l1}")
        A(t)
        A.label(l2)
        A.unlock()
        A.ool += [f"{l1}:", t + " sc1", f"s_branch {l2}"]

    class Poll:
        def __init__(self, sreg, imm, vidx, dst):
            self.load = f"buffer_load_dword {dst}, {vidx}, {srd['ws']}, {sreg} offen offset:{imm} sc1"
            self.dst = dst

        def issue(self):
            self.tok = A(self.load)

        def check(self):
            A.wait(vm=self.tok)
            lab, retry, done = A.newlabel("SPIN"), A.newlabel("RETRY"), A.newlabel("DONE")
            A.lock()
            A.label(lab)
            A(f"v_cmp_ne_u32 vcc, 1, {self.dst}")
            A("s_nop 0")
            A(f"s_cbranch_vccnz {retry}")
            A.label(done)
            A.unlock()
            A.ool += [f"{retry}:", self.load, "s_waitcnt vmcnt(0)", f"s_sub_u32 {sTO}, {sTO}, 1", f"s_cbranch_scc0 {lab}",
                      f"s_mov_b32 {sTO}, 0", f"s_branch {done}"]

    arr = {}

    def arrival_issue():
        arr["load"] = f"buffer_load_dword {vF[0]}, {vAr}, {srd['dbg']}, 0 offen sc1"
        arr["tok"] = A(arr["load"])

    def arrival_check():
        A.wait(vm=arr["tok"])
        retry, r2, done = A.newlabel("ARETRY"), A.newlabel("ASAFE"), A.newlabel("ADONE")
        A.lock()
        A(f"v_cmp_ne_u32 vcc, {vTag}, {vF[0]}")
        A(f"s_mov_b32 {sFAST}, {0 if opt.get('forcesafe') else 1}")
        A(f"s_cbranch_vccnz {retry}")
        A.label(done)
        A.unlock()
        A.ool += [f"{retry}:", f"s_mov_b32 {sT3}, {opt.get('arrtries', 20)}", f"{retry}_L:", arr["load"], "s_waitcnt vmcnt(0)",
                  f"v_cmp_ne_u32 vcc, {vTag}, {vF[0]}", "s_nop 1", f"s_cbranch_vccz {done}",
                  f"s_sub_u32 {sT3}, {sT3}, 1", f"s_cbranch_scc0 {retry}_L",
                  f"s_mov_b32 {sFAST}, 0",
                  f"{r2}:", f"buffer_load_dword {vF[0]}, {vZ4[0]}, {srd['dbg']}, {sARO} offen offset:128 sc1", "s_waitcnt vmcnt(0)",
                  f"v_cmp_ne_u32 vcc, 1, {vF[0]}", "s_nop 1", f"s_cbranch_vccz {done}",
                  f"s_sub_u32 {sTO}, {sTO}, 1", f"s_cbranch_scc0 {r2}", f"s_mov_b32 {sTO}, 0", f"s_branch {done}"]
        A(f"v_lshlrev_b32 {vT3}, 7, {vM16}")
        A(f"buffer_load_dword {vPF}, {vT3}, {srd['ws']}, {sFLB} offen sc1", nodef=True)

    def dma_qkv(s):
        base = RING + QS * (s % 3)
        fns = []
        for i in range(2):
            for g3 in range(3):
                def f(i=i, g3=g3):
                    if i == 0 and g3 == 0:
                        if ROTQ:
                            A(f"s_xor_b32 {sSO}, {sRQ}, {s << 7}")
                            A(f"s_mulk_i32 {sSO}, {64 * 3072 // 128}")
                        else:
                            A(f"s_mov_b32 {sSO}, {s * 64 * 3072}")
                        A(f"s_add_u32 m0, {sQM}, {base}")
                    elif g3 == 0:
                        A(f"s_addk_i32 m0, 3072")
                    if "qkv" in opt.get("drop", []):
                        return A.vmtok()
                    return A(f"buffer_load_dwordx4 {vWQ[i]}, {srd['qkv']}, {sSO} offen offset:{g3 * 1024} lds")
                fns.append(f)
        return group(fns, 10 + s)

    def act_loads(dst, so, dl, nm=""):
        fns = []
        for T in range(4):
            def f(T=T):
                if T == 0:
                    so()
                if "act" in opt.get("drop", []) or nm in opt.get("drop", []):
                    return A.vmtok()
                return A(f"buffer_load_dwordx4 {dst[4 * T:4 * T + 4]}, {vL16}, {srd['ws']}, {sAO} offen offset:{T * 1024} sc1")
            fns.append(f)
        return group(fns, dl)

    actB = AG.alloc(128, "actB")
    WP = [AG.alloc(32, f"WP{i}") for i in range(4)]
    XF = [actB[0:64], actB[64:128]]
    sbufs = [V.quads(20, "stat buf0"), V.quads(20, "stat buf1")]
    vXT = va(*[f"xt{t}" for t in range(4)])
    vSt, = va("stat rd addr")
    acch = V.alloc(16, "acch")
    csh = V.alloc(4, "csh")
    wf = [[WP[p][4 * g:4 * g + 4] for g in range(4)] for p in range(2)]
    qd = [dma_qkv(s) for s in range(8)]

    def dots(n):
        sb = sbufs[n % 2]
        o = []
        for i in range(5):
            for e in range(4):
                o += [f"v_dot2c_f32_bf16 {sacc[2 * i]}, {sb[4 * i + e]}, {vOnes[0]}",
                      f"v_dot2c_f32_bf16 {sacc[2 * i + 1]}, {sb[4 * i + e]}, {sb[4 * i + e]}"]
        return o
    fin = []
    for sh in (8, 4, 2, 1):
        for i in range(10):
            fin.append(f"v_add_f32_dpp {sacc[i]}, {sacc[i]}, {sacc[i]} row_ror:{sh} row_mask:0xf bank_mask:0xf")
    st = sbufs[0]
    for i in range(1, 4):
        for e in range(2):
            fin.append(f"v_mov_b32_dpp {sacc[e]}, {sacc[2 * i + e]} quad_perm:[0,1,2,3] row_mask:0xf bank_mask:0x{1 << i:x}")
    fin += [f"s_mov_b32 {s64[0]}, 0x00020002", f"s_mov_b32 {s64[1]}, {s64[0]}",
            f"v_cndmask_b32 {sacc[0]}, {sacc[0]}, {sacc[8]}, {s64}",
            f"v_cndmask_b32 {sacc[1]}, {sacc[1]}, {sacc[9]}, {s64}",
            f"v_mul_f32 {st[0]}, {f2u(1 / 512)}, {sacc[0]}",
            f"v_mul_f32 {st[5]}, {f2u(1 / 512)}, {sacc[1]}",
            f"v_fma_f32 {st[4]}, -{st[0]}, {st[0]}, {st[5]}",
            f"v_max_f32 {st[4]}, 0, {st[4]}",
            f"v_add_f32 {st[5]}, {f2u(EPS)}, {st[4]}",
            f"v_rsq_f32 {st[1]}, {st[5]}",
            f"v_mov_b32 {st[2]}, {st[0]}",
            f"v_mul_f32 {st[5]}, {st[1]}, {st[1]}",
            f"v_fmaak_f32 {st[5]}, {st[4]}, {st[5]}, {f2u(EPS)}",
            f"v_rsq_f32 {st[5]}, {st[5]}",
            f"ds_write_b64 {vT2}, {st[0:2]} offset:{MR}",
            f"v_mul_f32 {st[3]}, {st[1]}, {st[5]}",
            f"ds_write_b32 {vT3}, {st[0]} offset:{MEAN}",
            f"ds_write_b32 {vT3}, {st[1]} offset:{RSTD}",
            f"ds_write_b64 {vT2}, {st[2:4]} offset:{MH}"]
    A(f"v_and_b32 {vT0}, 12, {vL}")
    A(f"v_cmp_eq_u32 vcc, 1, {vM16}")
    A(f"s_mul_i32 {sT0}, {sW}, 20")
    A(f"v_cndmask_b32 {vT0}, {vT0}, 16, vcc")
    A(f"s_add_u32 {sT0}, {sT0}, 2")
    A(f"v_add3_u32 {vT0}, {vT0}, {vG}, {sT0}")
    A(f"v_lshlrev_b32 {vT2}, 3, {vT0}")
    A(f"v_lshlrev_b32 {vT3}, 2, {vT0}")

    steps = []
    fill1 = deque()
    for c in range(4):
        p = c % 2
        rd, mf = [f"v_add_u32 {vXT[t]}, {sXreg[c]}, {vXS[t]}" for t in range(4)], []
        st_rd = [f"s_add_u32 {sT0}, {sXreg[c]}, {sXW}", f"v_add_u32 {vSt}, {sT0}, {vL16}"]
        st_rd += [f"ds_read_b128 {sbufs[p][4 * i:4 * i + 4]}, {vSt} offset:{i * 1024}" for i in range(5)]
        if c == 3:
            rd = st_rd + rd
        for t in range(4):
            rd += [f"ds_read_b64_tr_b16 {wf[p][t][0:2]}, {vW1A} offset:{c * 16384 + t * 4096}",
                   f"ds_read_b64_tr_b16 {wf[p][t][2:4]}, {vW1A} offset:{c * 16384 + t * 4096 + 512}"]
            rd += [f"ds_read_b128 {XF[p][(t * 4 + b) * 4:(t * 4 + b) * 4 + 4]}, {vXT[t]} offset:{b * 4096}" for b in range(4)]
            n = c * 4 + t
            mf += [f"{M16} {acch[4 * b:4 * b + 4]}, {wf[p][t]}, {XF[p][(t * 4 + b) * 4:(t * 4 + b) * 4 + 4]}, {acch[4 * b:4 * b + 4] if n else 0}" for b in (3, 2, 1, 0)]
            mf += [f"{M16} {csh}, {wf[p][t]}, {vOnes}, {csh if n else 0}"]
        if c < 3:
            rd += st_rd
        stp = dict(reads=rd, mfma=mf, nowait=True)

        def pre(c=c):
            A.wait(vm=w1d[c][-1])
            A.bg_limit = 1 << 30
            at(f"xa{c}")
            A("s_barrier")
            if c == 2:
                assert clear_pos < w1d[c][-1].tok[1]
                announce()
                A.enqueue(qd[0])
        stp["pre"] = pre
        if c < 2:
            stp["post"] = list(reversed(dots(c)))
        if c == 2:
            stp["post"] = list(reversed(dots(2))) + dots(3)
            stp["end"] = lambda: fill1.extend(fin)
        steps.append(stp)
    EV["q1"] = lambda: A.enqueue(qd[1])
    EV["q2"] = lambda: A.enqueue(qd[2])
    run_steps(steps, opt.get("hk", 1), fill=fill1)
    run(fill1)
    barrier()
    at("hepi0")
    assert all(t.tok for t in tch)
    V.free(vXD, vXS, vXT, vSt, vW1A, sacc, sbufs, vWA1, vWA3)
    S.free(sXreg, sXk, sXW, srd["x"], srd["w1"])
    stamp("hpass")

    xf = [[WP[p][4 * b:4 * b + 4] for b in range(5)] for p in range(2)]
    wf = [[WP[p][20 + 4 * g:24 + 4 * g] for g in range(3)] for p in range(2)]
    accq, acck, accv = V.quads(16, "accq"), V.quads(20, "acck"), V.quads(20, "accv")
    csq, csk, csv = V.alloc(4, "csq"), V.alloc(4, "csk"), V.alloc(4, "csv")

    hmr = V.quads(8, "h mean/rr")
    hp = V.quads(8, "h packed")
    gt = V.quads(16, "gelu tmp")
    for b in range(4):
        A(f"ds_read_b64 {hmr[2 * b:2 * b + 2]}, {vHr} offset:{MH + 16 + 128 * b}")
    arrival_issue()
    vC0 = V.alloc(2, "c0 pair")
    A(f"v_mov_b32 {vC0[0]}, {sC[0]}")
    u = lambda i: acch[2 * i:2 * i + 2]
    mr = lambda i: hmr[2 * (i // 2): 2 * (i // 2) + 2]
    cs = lambda i: csh[2 * (i % 2): 2 * (i % 2) + 2]
    g_ = lambda i: gt[2 * i:2 * i + 2]
    A.wait(lg=A.lg_issued)
    for i in range(8):
        A(f"v_pk_fma_f32 {u(i)}, {cs(i)}, {mr(i)}, {u(i)} op_sel_hi:[1,0,1] neg_lo:[0,1,0] neg_hi:[0,1,0]")
    for i in range(8):
        A(f"v_pk_mul_f32 {u(i)}, {u(i)}, {mr(i)} op_sel:[0,1] op_sel_hi:[1,1]")
    for i in range(8):
        A(f"v_pk_mul_f32 {g_(i)}, {u(i)}, {u(i)}")
    for i in range(8):
        A(f"v_pk_fma_f32 {g_(i)}, {g_(i)}, {sC}, {vC0} op_sel:[0,1,0] op_sel_hi:[1,1,0]")
    for i in range(8):
        A(f"v_pk_mul_f32 {g_(i)}, {g_(i)}, {u(i)}")
    for i in range(16):
        A(f"v_exp_f32 {gt[i]}, {gt[i]}")
    at("hepi1")
    for i in range(8):
        A(f"v_pk_add_f32 {g_(i)}, {g_(i)}, 1.0 op_sel_hi:[1,0]")
    for i in range(16):
        A(f"v_rcp_f32 {gt[i]}, {gt[i]}")
    for i in range(8):
        A(f"v_pk_mul_f32 {g_(i)}, {g_(i)}, {u(i)}")
    for i in range(8):
        A(f"v_cvt_pk_bf16_f32 {hp[i]}, {gt[2 * i]}, {gt[2 * i + 1]}")

    def swap_pairs(pk):
        for p in range(2):
            A(f"v_permlane16_swap_b32 {pk[4 * p]}, {pk[4 * p + 2]}")
            A(f"v_permlane16_swap_b32 {pk[4 * p + 1]}, {pk[4 * p + 3]}")

    def store_pairs(pk, base):
        o = []
        for p in range(2):
            o += [f"s_add_u32 {sT0}, {sHO}, {base + p * 32768}",
                  f"buffer_store_dwordx4 {pk[4 * p:4 * p + 4]}, {vL16}, {srd['ws']}, {sT0} offen sc1"]
        return o
    swap_pairs(hp)
    A.lock()
    announce_cleared()
    run(store_pairs(hp, WS_H))
    hst = A.vmtok()
    A.unlock()
    at("hepi2")
    V.free(hmr, hp, gt, vC0, acch, csh, vHr)
    stamp("hstored")

    W2S = [L[0], L[1], L[2], L[8]]
    W3I = [[5, 3, 4, 6], [7, 1, 2, 8]]
    WOS = [L[7], L[1], L[2], L[8]]
    W4S = [L[0], L[5], L[3], L[4], L[6], L[7], L[1], L[2], L[8]]
    acc = [V.alloc(16, "acc0"), V.alloc(16, "acc1")]
    xfp = V.quads(16, "x fp32")
    xres = acc[1][0:8]
    vMRo = acc[1][8:10]
    vHalf, vM32, vI16, vI7 = va("half", "m32", "i16", "i7")
    sMB, sM3, sSmB, sAsB, sW3b, sX1b, sW4b, sH2b = sa("mb own", "mb p3", "w2/wo base", "h/o base", "w3 base", "x1 base", "w4 base", "h2 base")
    sFoH, sFoX, sFo2, sPoH, sPoX, sPo2, sX1o, sH2o = sa(*"foh fox fo2 poh pox po2 x1o h2o".split())
    sW3c, sWX, sW4c, sH2c = sa("w3 base hi", "wx", "w4 base b", "h2 base b")
    sI7 = sa(*[f"i7_{q}" for q in range(7)])
    sCB = [sa(*[f"cb{p}{c}" for c in range(4)]) for p in range(2)]
    vW3 = va(*[f"w3_{i}" for i in range(4)])
    vBN, vBP, vB3 = va("bn0", "bn1"), va("bp0", "bp1"), va("b30", "b31")
    vPar, = va("par")
    vMs, selS, selP = va("ms0", "ms1"), va("selS0", "selS1"), va("selP0", "selP1")
    vEXw, vEXr = va("exw", "exr")
    tabm = {}
    mark_ = lambda k: (lambda: tabm.update({k: 1}))
    def rot2_setup():
        A(f"s_and_b32 {sR2}, {sRB}, {3 if ROT2 else 0}")
        if ROT2 == 2:
            A(f"s_cmp_eq_u32 {sJ}, 3")
            A(f"s_cselect_b32 {sR2}, {sR2}, 0")
        if ROTA:
            A(f"s_xor_b32 {sR2}, {sR2}, {sJ}")
            A(f"s_and_b32 {sR2}, {sR2}, 3")
        A(f"s_lshl_b32 {sR2}, {sR2}, 12")
    tab = deque()
    tab += [f"s_lshr_b32 {sKH}, {sW}, 1",
            f"s_and_b32 {sMH}, {sW}, 1",
            f"v_lshrrev_b32 {vHalf}, 5, {vL}",
            f"v_and_b32 {vM32}, 31, {vL}",
            f"s_lshr_b32 {sT0}, {sJ}, 1",
            f"s_lshl_b32 {sT0}, {sT0}, 8",
            f"s_xor_b32 {sT0}, {sT0}, {sRQ if ROTQ else 0}",
            f"s_mulk_i32 {sT0}, 80",
            f"s_addk_i32 {sT0}, {XB}",
            f"s_lshl_b32 {sT1}, {sMH}, 5",
            f"s_add_u32 {sT1}, {sT1}, 14",
            f"v_add_u32 {vT0}, {sT1}, {vM32}",
            f"s_lshl1_add_u32 {sT2}, {sJ}, {sKH}",
            f"s_lshl_b32 {sT2}, {sT2}, 2",
            f"v_lshlrev_b32 {vT1}, 1, {vT0}",
            f"v_bitop3_b32 {vT1}, {vT1}, {sT2}, 15 bitop3:0x28",
            f"v_lshl_add_u32 {vT1}, {vT0}, 4, {vT1}",
            f"v_lshl_add_u32 {vT1}, {vT1}, 1, {vHalf}",
            f"v_lshl_add_u32 {vT1}, {vT1}, 3, {sT0}"]
    for q in range(4):
        tab += [f"v_xor_b32 {vT2}, {q * 16}, {vT1}", f"ds_read_b64 {xres[2 * q:2 * q + 2]}, {vT2}"]
    tab += [f"v_lshlrev_b32 {vT0}, 3, {vT0}", f"ds_read_b64 {vMRo}, {vT0} offset:{MR + 16}",
            f"v_add_u32 {vWB[1]}, 7168, {vWB[0]}", f"v_add_u32 {vWB[3]}, {3 * 7168}, {vWB[0]}",
            f"s_mul_i32 {sSmB}, {sKH}, {3 << 16}", rot2_setup, mark_("x"),
            f"s_lshl2_add_u32 {sT0}, {sLI}, {sW}",
            f"s_lshl2_add_u32 {sFoH}, {sT0}, {sFLB}", mark_("h"),
            f"v_lshlrev_b32 {vI16}, 2, {vM16}",
            f"v_min_u32 {vI7}, 24, {vI16}",
            f"s_lshl1_add_u32 {sMB}, {sRB}, {sMH}",
            f"s_lshl2_add_u32 {sM3}, {sCL}, {sW}",
            f"s_min_u32 {sTILE}, {sLI}, 13",
            f"s_and_b32 {sT0}, {sRB}, 1",
            f"s_lshl1_add_u32 {sT0}, {sT0}, {sKH}",
            f"s_lshl_b32 {sT0}, {sT0}, 6",
            f"s_add_u32 {sPoH}, {sT0}, {sFLB}",
            f"s_lshl1_add_u32 {sT1}, {sMB}, {sKH}",
            f"s_lshl_b32 {sAsB}, {sT1}, 14",
            f"s_add_u32 {sAsB}, {sAsB}, {sR2}",
            f"s_mul_i32 {sT1}, {sT1}, {7 << 13}",
            f"s_add_u32 {sH2b}, {sT1}, {WS_H2}", mark_("p"),
            f"s_lshl3_add_u32 {sT0}, {sMB}, {sJ}",
            f"s_lshl1_add_u32 {sX1o}, {sT0}, {sKH}",
            f"s_and_b32 {sT0}, {sX1o}, 63",
            f"s_lshl2_add_u32 {sFoX}, {sT0}, {sFLB}",
            f"s_lshl_b32 {sT0}, {sW}, 6",
            f"s_add_u32 {sPoX}, {sT0}, {sFLB}",
            f"s_lshl2_add_u32 {sFo2}, {sLI}, {sPoX}",
            f"s_and_b32 {sT0}, {sMB}, 3",
            f"s_lshl_b32 {sT0}, {sT0}, 6",
            f"s_mul_i32 {sT1}, {sKH}, 28",
            f"s_add_u32 {sT0}, {sT0}, {sT1}",
            f"s_add_u32 {sPo2}, {sT0}, {sFLB}",
            f"s_mul_i32 {sT0}, {sM3}, 14",
            f"s_add_u32 {sT0}, {sT0}, {sTILE}",
            f"s_lshl_b32 {sT0}, {sT0}, 13",
            f"s_add_u32 {sH2o}, {sT0}, {WS_H2}",
            f"s_and_b32 {sWX}, {sTILE}, {3 if ROTA else 0}",
            f"s_xor_b32 {sWX}, {sWX}, {sW}",
            f"s_lshl2_add_u32 {sT0}, {sM3}, {sWX}",
            f"s_and_b32 {sT1}, {sRB}, {2 if ROT3 else 0}",
            f"s_xor_b32 {sT0}, {sT0}, {sT1}",
            f"s_mul_i32 {sW3c}, {sT1}, {128 * 3584}",
            f"s_lshl_b32 {sT0}, {sT0}, 13",
            f"s_add_u32 {sX1b}, {sT0}, {WS_X1}",
            f"s_mul_i32 {sW4b}, {sKH}, {13 << 16}",
            f"s_lshl_b32 {sT0}, {sTILE}, 8",
            f"s_add_u32 {sW3b}, {sT0}, {sW3c}",
            f"s_sub_u32 {sW3c}, {sT0}, {sW3c}",
            f"s_lshl_b32 {sT0}, {sW}, 5",
            f"v_add_u32 {vT0}, {sT0}, {vR8}",
            f"v_mul_u32_u24 {vT0}, 3584, {vT0}",
            f"v_add_u32 {vW3[0]}, {vT0}, {vSB}"]
    tab += [f"v_add_u32 {vW3[i]}, {i * (8 * 3584 - 1024)}, {vW3[0]}" for i in range(1, 4)]
    if IDLE:
        vI4, vI3 = va("idle w4 share", "idle w3b")

        def idle_only(fn):
            lab = A.newlabel("NIDLE")
            A.lock()
            A(f"s_cmp_lt_u32 {sLI}, 14")
            A(f"s_cbranch_scc1 {lab}")
            A.cond_begin()
            fn()
            A.cond_end()
            A.label(lab)
            A.unlock()
            return A.vmtok()

        def idle_setup():
            for i in range(4):
                A(f"v_mov_b32 {vW3[i]}, {OOB}")
        tab += [lambda: idle_only(idle_setup),
                f"s_lshl1_add_u32 {sT0}, {sCL}, {sLI}",
                f"s_sub_u32 {sT0}, {sT0}, 14",
                f"s_lshl2_add_u32 {sT0}, {sT0}, {sW}",
                f"s_mul_i32 {sT1}, {sT0}, {112 * 128}",
                f"v_min_u32 {vT0}, 55, {vL}",
                f"v_lshl_add_u32 {vI4}, {vT0}, 7, {sT1}",
                f"s_and_b32 {sT0}, {sT0}, 15",
                f"s_lshl_b32 {sT0}, {sT0}, 14",
                f"s_addk_i32 {sT0}, 128",
                f"v_lshl_add_u32 {vI3}, {vL}, 8, {sT0}"]

        def i4():
            A(f"buffer_load_dword {vPF}, {vI4}, {srd['w4']}, 0 offen", nodef=True, count=False)
            A(f"s_movk_i32 {sSO}, {56 * 128}")
            A(f"buffer_load_dword {vPF}, {vI4}, {srd['w4']}, {sSO} offen", nodef=True, count=False)
        i4d = group([lambda: idle_only(i4)], 18.5)

        def i3(k, so, count):
            A(f"s_mov_b32 {so}, {k << 18}")
            A(f"buffer_load_dword {vPF}, {vI3}, {srd['w3']}, {so} offen", nodef=True, count=count)
        I3EARLY = opt.get("i3early", 0)
        i3d = [group([lambda k=k: idle_only(lambda: i3(k, sSO, False))], 20.5) for k in range(I3EARLY)]
    tab += [mark_("w3"),
            f"v_lshl_add_u32 {vB3[0]}, {vHalf}, 9, {vTB}",
            f"v_xor_b32 {vB3[1]}, 64, {vB3[0]}",
            f"s_mul_i32 {sT0}, {sKH}, {8192 + 64}",
            f"v_xor_b32 {vBP[0]}, {sT0}, {vB3[0]}",
            f"v_xor_b32 {vBP[1]}, 64, {vBP[0]}",
            f"v_lshl_add_u32 {vT0}, {vHalf}, 10, {vTB}",
            f"v_xor_b32 {vBN[0]}, {sT0}, {vT0}",
            f"v_xor_b32 {vBN[1]}, 64, {vBN[0]}",
            f"v_add_u32 {vEXw}, {sM0W}, {vL16}",
            f"v_xor_b32 {vEXr}, 8192, {vEXw}"]
    for p in range(2):
        lit = sum(W3I[p][c] << (4 * c) for c in range(4))
        for c in range(4):
            tab += [f"s_xor_b32 {sT0}, {sWX}, {c}",
                    f"s_lshl2_add_u32 {sT0}, {sT0}, 0x40000",
                    f"s_bfe_u32 {sT0}, 0x{lit:x}, {sT0}",
                    f"s_lshl_b32 {sCB[p][c]}, {sT0}, 14"]
    lit7 = sum((v % 7) << (4 * v) for v in range(16))

    def rot4_setup():
        A(f"s_and_b32 {sT0}, {sRB}, {3 if ROT4 else 0}")
        if ROT4 == 2:
            A(f"s_cmp_eq_u32 {sJ}, 3")
            A(f"s_cselect_b32 {sT0}, {sT0}, 0")
        A(f"s_lshl1_add_u32 {sT0}, {sT0}, {sJ if ROTA else 0}")
        A(f"s_cmp_ge_u32 {sT0}, 7")
        A(f"s_cselect_b32 {sT1}, 7, 0")
        A(f"s_sub_u32 {sT0}, {sT0}, {sT1}")
    tab += [rot4_setup, f"s_mov_b32 {s64[0]}, 0x{lit7 & 0xffffffff:x}", f"s_mov_b32 {s64[1]}, 0x{lit7 >> 32:x}",
            f"s_lshl_b32 {sT0}, {sT0}, 2", f"s_lshr_b64 {s64}, {s64}, {sT0}"]
    for q in range(7):
        tab += [f"s_bfe_u32 {sT0}, {s64[0]}, 0x{(4 << 16) | (4 * q):x}", f"s_lshl_b32 {sI7[q]}, {sT0}, 13"]
    tab += [f"s_add_u32 {sW4c}, {sW4b}, 65536", f"s_add_u32 {sH2c}, {sH2b}, 4096"]
    tab += [f"v_mul_f32 {vMRo[0]}, {vMRo[0]}, {vMRo[1]}"]
    for i in range(8):
        tab += [f"v_lshlrev_b32 {xfp[2 * i]}, 16, {xres[i]}", f"v_and_b32 {xfp[2 * i + 1]}, 0xffff0000, {xres[i]}"]
    tab += [f"v_fma_f32 {acc[0][i]}, {xfp[i]}, {vMRo[1]}, -{vMRo[0]}" for i in range(16)]
    tab += [f"v_and_b32 {vT2}, 1, {vL}",
            f"v_sub_u32 {vPar}, 0, {vT2}",
            f"v_lshl_add_u32 {vT2}, {vG}, 2, {vT2}",
            f"v_sub_u32 {vT2}, {vT2}, {vM16}"]
    for e in range(2):
        lo, hi = (0x0c0c0100, 0x01000c0c) if e == 0 else (0x0c0c0302, 0x03020c0c)
        tab += [f"v_add_u32 {vMs[e]}, {2 * e - 1}, {vT2}",
                f"v_ashrrev_i32 {vMs[e]}, 31, {vMs[e]}",
                f"v_mov_b32 {vT0}, 0x{hi:x}",
                f"v_mov_b32 {vT1}, 0x{lo:x}",
                f"v_bfi_b32 {vT0}, {vPar}, {vT0}, {vT1}",
                f"v_mov_b32 {vT1}, 0x0c0c0c0c",
                f"v_bfi_b32 {selS[e]}, {vMs[e]}, {vT0}, {vT1}",
                f"v_bfi_b32 {selP[e]}, {vMs[e]}, {vT1}, {vT0}"]

    def so_small(q):
        def f():
            if ROT2 or ROTA:
                A(f"s_xor_b32 {sSO}, {sR2}, {q << 12}")
                A(f"s_lshl4_add_u32 {sSO}, {sSO}, {sSmB}")
            else:
                A(f"s_add_u32 {sSO}, {sSmB}, {q << 16}")
        return f
    w2d = [dma_chunk("w2", vWB, so_small(q), W2S[q], 17.5) for q in range(4)]
    wod = [dma_chunk("wo", vWB, so_small(q), WOS[q], 21) for q in range(4)]
    w3d = [[dma_chunk("w3", vW3, (lambda p=p, c=c: A(f"s_add_u32 {sSO}, {sW3c if c >= 2 else sW3b}, {c * 128 * 3584 + p * 128}")), L[W3I[p][c]], 20 + 3 * p)
            for c in range(4)] for p in range(2)]
    w4d = [dma_chunk("w4", vWB, (lambda q=q: A(f"s_lshl4_add_u32 {sSO}, {sI7[q % 7]}, {sW4c if q >= 7 else sW4b}")), W4S[q % 9], 31 + q) for q in range(14)]
    hl = [act_loads(actB[16 * q:16 * q + 16], (lambda q=q: A(f"s_xor_b32 {sAO}, {sAsB}, {WS_H + q * 4096}")), 18, "h") for q in range(4)]
    ol = [act_loads(actB[16 * q:16 * q + 16], (lambda q=q: A(f"s_xor_b32 {sAO}, {sAsB}, {WS_O + q * 4096}")), 30 + q, "o") for q in range(4)]
    x1l = [act_loads(actB[16 * i:16 * i + 16], (lambda i=i: A(f"s_xor_b32 {sAO}, {sX1b}, {i << 12}")), 22, "x1") for i in range(8)]
    h2buf = lambda q: actB[16 * ((q + 4) % 8):16 * ((q + 4) % 8) + 16]
    h2l = [act_loads(h2buf(q), (lambda q=q: A(f"s_add_u32 {sAO}, {sI7[q % 7]}, {sH2c if q >= 7 else sH2b}")), 34 + q, "h2") for q in range(14)]
    hpoll = Poll(sPoH, FL_H, vI16, vF[0])

    def need(k):
        while k not in tabm:
            do(tab.popleft())

    def ev_hpub():
        need("h")
        arrival_check()
        A.wait(vm=hst)
        flag_set(sFoH, FL_H)

    def ev_hchk():
        hpoll.check()
        A.enqueue(sum(hl, []))
        if IDLE:
            A.enqueue(i4d)
    EV.update(hpub=ev_hpub, hiss=hpoll.issue, hchk=ev_hchk)

    vRA = va("ra0", "ra1")

    def w_reads(addr, base, second, dst, extra=0):
        rd = [f"v_add_u32 {vRA[nb]}, {base}, {addr[nb]}" for nb in range(2)]
        for T in range(4):
            for nb in range(2):
                f = dst[(T * 2 + nb) * 4:(T * 2 + nb) * 4 + 4]
                rd += [f"ds_read_b64_tr_b16 {f[0:2]}, {vRA[nb]} offset:{extra + T * 2048}",
                       f"ds_read_b64_tr_b16 {f[2:4]}, {vRA[nb]} offset:{extra + T * 2048 + second}"]
        return rd

    def stage_mfma(wb, accs, act, zero=(False, False), acc1_first=False):
        order = [(T, nb) for T in range(4) for nb in range(2)]
        if acc1_first:
            order = [(T, nb) for nb in (1, 0) for T in range(4)]
        return [f"{M32} {accs[nb]}, {wb[(T * 2 + nb) * 4:(T * 2 + nb) * 4 + 4]}, {act[4 * T:4 * T + 4]}, {0 if (T == 0 and zero[nb]) else accs[nb]}"
                for T, nb in order]

    def ex_writes(slot):
        return [f"v_add_u32 {vT0}, {slot}, {vEXw}", f"v_add_u32 {vT1}, {slot}, {vEXr}"], \
               [f"ds_write_b128 {vT0}, {acc[1][4 * q:4 * q + 4]} offset:{q * 1024}" for q in range(4)]

    def with_ex(mf, slot):
        ad, wr = ex_writes(slot)
        return mf[:4] + [lambda: run(ad)] + mf[4:7] + [lambda: run(wr[:2])] + mf[7:] + [lambda: run(wr[2:])]

    def ex_finish():
        barrier()
        for q in range(4):
            A(f"ds_read_b128 {acc[1][4 * q:4 * q + 4]}, {vT1} offset:{q * 1024}")
        for i in range(8):
            A(f"v_pk_add_f32 {acc[0][2 * i:2 * i + 2]}, {acc[0][2 * i:2 * i + 2]}, {acc[1][2 * i:2 * i + 2]}")

    p2steps = []
    for q in range(4):
        wb = WP[(q + 2) % 4]
        mf = stage_mfma(wb, acc, actB[16 * q:16 * q + 16], zero=(False, q == 0), acc1_first=(q == 3))
        if q == 3:
            mf = with_ex(mf, L[0])
        stp = dict(reads=w_reads(vBN, W2S[q], 512, wb), mfma=mf)

        def start(q=q):
            if q == 3:
                barrier()
                A.enqueue(wod[1] + wod[2] + wod[3])
                if IDLE:
                    A.enqueue(sum(i3d, []), dl=21.5)
            A.wait(vm=hl[q][-1])
        stp["start"] = start
        p2steps.append(stp)

    steps = []

    def freed(s):
        if s + 3 < 8:
            A.enqueue(qd[s + 3])
        if s == 1:
            A.enqueue(w2d[0])
        if s == 3:
            A.enqueue(w2d[1])
        if s == 5:
            A.enqueue(w2d[2] + w2d[3])
        if s == 6:
            A.enqueue(w3d[0][0])
        if s == 7:
            A.enqueue(w3d[0][1] + w3d[0][2] + w3d[0][3] + wod[0])
    for n in range(16):
        s, u_ = divmod(n, 2)
        c, t = divmod(n, 4)
        p = n % 2
        xo = (c % 2) * XR
        wo_ = QS * (s % 3) + u_ * 12288
        rd = []
        if n == 8:
            rd += [f"v_add_u32 {r_}, {2 * XR}, {r_}" for r_ in vXA + vXH]
        for g3 in range(3):
            rd += [f"ds_read_b64_tr_b16 {wf[p][g3][0:2]}, {vWQA} offset:{wo_ + g3 * 1024}",
                   f"ds_read_b64_tr_b16 {wf[p][g3][2:4]}, {vWQA} offset:{wo_ + g3 * 1024 + 512}"]
        rd += [f"ds_read_b128 {xf[p][0]}, {vXH[t]} offset:{xo}"]
        rd += [f"ds_read_b128 {xf[p][b + 1]}, {vXA[t]} offset:{xo + b * 4096}" for b in range(4)]
        z = lambda r_: r_ if n else 0
        mf = [f"{M16} {csq}, {wf[p][0]}, {vOnes}, {z(csq)}",
              f"{M16} {csk}, {wf[p][1]}, {vOnes}, {z(csk)}",
              f"{M16} {csv}, {vOnes}, {wf[p][2]}, {z(csv)}"]
        for kb in range(5):
            mf.append(f"{M16} {acck[4 * kb:4 * kb + 4]}, {wf[p][1]}, {xf[p][kb]}, {z(acck[4 * kb:4 * kb + 4])}")
            mf.append(f"{M16} {accv[4 * kb:4 * kb + 4]}, {xf[p][kb]}, {wf[p][2]}, {z(accv[4 * kb:4 * kb + 4])}")
            if kb:
                b = kb - 1
                mf.append(f"{M16} {accq[4 * b:4 * b + 4]}, {wf[p][0]}, {xf[p][kb]}, {z(accq[4 * b:4 * b + 4])}")
        stp = dict(reads=rd, mfma=mf)
        if u_ == 0:
            def pre(s=s):
                barrier(vm=qd[s][-1])
                if s:
                    freed(s - 1)
            stp["pre"] = pre

        def end(n=n):
            if n == 2:
                need("x")
            if n == 9:
                need("p")
            if n == 11:
                need("w3")
            if n == 14:
                run(tab)
                tab.clear()
            at(f"qkv{n}")
        stp["end"] = end
        steps.append(stp)

    def p2pre():
        barrier(vm=w2d[3][-1])
        freed(7)
    p2steps[0]["pre"] = p2pre
    steps[15]["k"] = 1.25
    run_steps(steps, 1, fill=tab, tail=p2steps[0])
    V.free(vXA, vXH, vWQA, vWQ, vSB, vR8, vTB)
    S.free(sQM, srd["qkv"])
    stamp("qkv")

    run_steps(p2steps, 3, primed=1)
    stamp("p2mm")
    A.lock()
    ex_finish()
    pk8 = V.quads(8, "pk8")
    for i in range(8):
        A(f"v_cvt_pk_bf16_f32 {pk8[i]}, {acc[0][2 * i]}, {acc[0][2 * i + 1]}")
    A(f"s_lshl_b32 {sT0}, {sX1o}, 11")
    A(f"s_add_u32 {sT0}, {sT0}, {WS_X1}")
    for c in range(2):
        A(f"buffer_store_dwordx4 {pk8[4 * c:4 * c + 4]}, {vL16}, {srd['ws']}, {sT0} offen offset:{c * 1024} sc1")
    sq = acc[1]
    A(f"v_pk_add_f32 {sq[0:2]}, {acc[0][0:2]}, {acc[0][2:4]}")
    A(f"v_pk_mul_f32 {sq[2:4]}, {acc[0][0:2]}, {acc[0][0:2]}")
    A(f"v_pk_fma_f32 {sq[2:4]}, {acc[0][2:4]}, {acc[0][2:4]}, {sq[2:4]}")
    for i in range(2, 8):
        A(f"v_pk_add_f32 {sq[0:2]}, {sq[0:2]}, {acc[0][2 * i:2 * i + 2]}")
        A(f"v_pk_fma_f32 {sq[2:4]}, {acc[0][2 * i:2 * i + 2]}, {acc[0][2 * i:2 * i + 2]}, {sq[2:4]}")
    A(f"v_add_f32 {sq[0]}, {sq[0]}, {sq[1]}")
    A(f"v_add_f32 {sq[2]}, {sq[2]}, {sq[3]}")
    A(f"v_lshlrev_b32 {vT0}, 2, {vL}")
    A(f"s_lshl_b32 {sT0}, {sX1o}, 8")
    A(f"s_add_u32 {sT0}, {sT0}, {WS_ST}")
    A(f"v_permlane32_swap_b32 {sq[0]}, {sq[2]}")
    A(f"v_add_f32 {sq[0]}, {sq[0]}, {sq[2]}")
    x1st = A(f"buffer_store_dword {sq[0]}, {vT0}, {srd['ws']}, {sT0} offen sc1")
    A.unlock()
    kmr = V.quads(12, "k mean/rstd")
    vmean = V.quads(20, "v mean")
    vrstd = V.quads(20, "v rstd")
    A(f"v_lshlrev_b32 {vT0}, 3, {vM16}")
    A(f"v_lshlrev_b32 {vT1}, 4, {vG}")
    for kb in range(5):
        A(f"ds_read_b128 {vmean[4 * kb:4 * kb + 4]}, {vT1} offset:{MEAN + 64 * kb}")
        A(f"ds_read_b128 {vrstd[4 * kb:4 * kb + 4]}, {vT1} offset:{RSTD + 64 * kb}")
    for kb in range(5):
        A(f"ds_read_b64 {kmr[2 * kb:2 * kb + 2]}, {vT0} offset:{MR + 128 * kb}")
    for i in range(8):
        A(f"v_pk_add_f32 {acc[0][2 * i:2 * i + 2]}, {acc[0][2 * i:2 * i + 2]}, {xfp[2 * i:2 * i + 2]}")
    V.free(xfp)
    stamp("x1stored")

    def pub_x1():
        A.wait(vm=x1st)
        flag_set(sFoX, FL_X1)
    x1poll = Poll(sPoX, FL_X1, vI16, vF[0])
    EV.update(x1pub=pub_x1, x1iss=x1poll.issue)

    A.wait(lg=A.lg_issued)

    def fold_rows(accr, cs, mr, dst):
        for e in range(2):
            u = accr[2 * e:2 * e + 2]
            A(f"v_pk_fma_f32 {u}, {cs[2 * e:2 * e + 2]}, {mr}, {u} op_sel_hi:[1,0,1] neg_lo:[0,1,0] neg_hi:[0,1,0]")
        for e in range(2):
            u = accr[2 * e:2 * e + 2]
            A(f"v_pk_mul_f32 {u}, {u}, {mr} op_sel:[0,1] op_sel_hi:[1,1]")
        for e in range(2):
            A(f"v_cvt_pk_bf16_f32 {dst[e]}, {accr[2 * e]}, {accr[2 * e + 1]}")
    for kb in range(5):
        for e in range(2):
            u = accv[4 * kb + 2 * e:4 * kb + 2 * e + 2]
            A(f"v_pk_fma_f32 {u}, {vmean[4 * kb + 2 * e:4 * kb + 2 * e + 2]}, {csv[0:2]}, {u} neg_lo:[1,0,0] neg_hi:[1,0,0]")
        for e in range(2):
            u = accv[4 * kb + 2 * e:4 * kb + 2 * e + 2]
            A(f"v_pk_mul_f32 {u}, {u}, {vrstd[4 * kb + 2 * e:4 * kb + 2 * e + 2]}")
    V.free(vmean, vrstd)
    Qp, Kp, Vp = V.quads(8, "Qp"), V.quads(12, "Kp"), V.quads(12, "Vp")
    for kb in range(5):
        fold_rows(acck[4 * kb:4 * kb + 4], csk, kmr[2 * kb:2 * kb + 2], Kp[2 * kb:2 * kb + 2])
    for b in range(4):
        fold_rows(accq[4 * b:4 * b + 4], csq, kmr[2 * b + 2:2 * b + 4], Qp[2 * b:2 * b + 2])
    at("attn0")
    Ss, Sp = accq, acck
    Pz = V.quads(8, "pk,0 pairs")
    cv = [f"v_cvt_pk_bf16_f32 {Vp[i]}, {accv[2 * i]}, {accv[2 * i + 1]}" for i in range(10)]
    cv += [lambda: run([f"s_cmp_eq_u32 {sRB}, 0", f"s_cselect_b32 {sT0}, -1, 0"]), f"v_mov_b32 {vT1}, {f2u(-4e9)}"]
    cv += [f"v_mov_b32 {Pz[2 * b + 1]}, 0" for b in range(4)]
    mf = []
    for b in range(4):
        mf.append(f"{MA} {Ss[4 * b:4 * b + 4]}, {Kp[2 * b + 2:2 * b + 4]}, {Qp[2 * b:2 * b + 2]}, 0")
        mf.append(f"{MA} {Sp[4 * b:4 * b + 4]}, {Kp[2 * b:2 * b + 2]}, {Qp[2 * b:2 * b + 2]}, 0")
    run(weave(mf, cv, 2))
    V.free(kmr, csq, csk, csv)
    lg = V.quads(8, "logits")
    mx = V.alloc(4, "mx")
    mt = V.alloc(4, "mt")
    for b in range(4):
        for e in range(2):
            A(f"v_bfi_b32 {Ss[4 * b + 2 * e]}, {vPar}, {Ss[4 * b + 2 * e + 1]}, {Ss[4 * b + 2 * e]}")
            A(f"v_bfi_b32 {Sp[4 * b + 2 * e]}, {vPar}, {Sp[4 * b + 2 * e + 1]}, {Sp[4 * b + 2 * e]}")
            if b == 0:
                A(f"v_bfi_b32 {Sp[2 * e]}, {sT0}, {vT1}, {Sp[2 * e]}")
            A(f"v_bfi_b32 {lg[2 * b + e]}, {vMs[e]}, {Ss[4 * b + 2 * e]}, {Sp[4 * b + 2 * e]}")
    for b in range(4):
        A(f"v_max_f32 {mx[b]}, {lg[2 * b]}, {lg[2 * b + 1]}")
    for sw in ("v_permlane16_swap_b32", "v_permlane32_swap_b32"):
        for b in range(2):
            A(f"v_mov_b64 {mt[2 * b:2 * b + 2]}, {mx[2 * b:2 * b + 2]}")
        for b in range(4):
            A(f"{sw} {mx[b]}, {mt[b]}")
        for b in range(4):
            A(f"v_max_f32 {mx[b]}, {mx[b]}, {mt[b]}")
    at("attn1")
    A(f"s_mov_b32 {s64[0]}, {f2u(0.25 * LOG2E)}")
    for b in range(4):
        sel = b % 2
        A(f"v_pk_add_f32 {lg[2 * b:2 * b + 2]}, {lg[2 * b:2 * b + 2]}, {mx[2 * (b // 2):2 * (b // 2) + 2]} op_sel:[0,{sel}] op_sel_hi:[1,{sel}] neg_lo:[0,1] neg_hi:[0,1]")
    for b in range(4):
        A(f"v_pk_mul_f32 {lg[2 * b:2 * b + 2]}, {lg[2 * b:2 * b + 2]}, {s64} op_sel_hi:[1,0]")
    for i in range(8):
        A(f"v_exp_f32 {lg[i]}, {lg[i]}")
    Ps, Pp = V.quads(8, "Psame"), V.quads(8, "Pprev")
    for b in range(4):
        A(f"v_cvt_pk_bf16_f32 {Pz[2 * b]}, {lg[2 * b]}, {lg[2 * b + 1]}")
    Osum, Oacc = acck, accq
    pm = []
    for PP, sel in ((Ps, selS), (Pp, selP)):
        for b in range(4):
            for e in range(2):
                pm.append(f"v_perm_b32 {PP[2 * b + e]}, {Pz[2 * b]}, {Pz[2 * b]}, {sel[e]}")
    mf = [f"{MA} {Osum[4 * b:4 * b + 4]}, {vOnes[0:2]}, {Pz[2 * b:2 * b + 2]}, 0" for b in range(4)]
    mf += [f"{MA} {Oacc[4 * b:4 * b + 4]}, {Vp[2 * b + 2:2 * b + 4]}, {Ps[2 * b:2 * b + 2]}, 0" for b in range(4)]
    run(weave(mf, pm, 2))
    mf = [f"{MA} {Oacc[4 * b:4 * b + 4]}, {Vp[2 * b:2 * b + 2]}, {Pp[2 * b:2 * b + 2]}, {Oacc[4 * b:4 * b + 4]}" for b in range(4)]
    run(weave(mf, [f"v_rcp_f32 {Osum[4 * b]}, {Osum[4 * b]}" for b in range(4)], 1))
    at("attn2")
    for b in range(4):
        for e in range(2):
            u = Oacc[4 * b + 2 * e:4 * b + 2 * e + 2]
            A(f"v_pk_mul_f32 {u}, {u}, {Osum[4 * b:4 * b + 2]} op_sel_hi:[1,0]")
    for b in range(4):
        for e in range(2):
            A(f"v_cvt_pk_bf16_f32 {pk8[2 * b + e]}, {Oacc[4 * b + 2 * e]}, {Oacc[4 * b + 2 * e + 1]}")
    swap_pairs(pk8)
    otok = {}

    def ev_ost():
        A.lock()
        run(store_pairs(pk8, WS_O))
        otok["t"] = A.vmtok()
        A.unlock()

    def ev_opub():
        A.wait(vm=otok["t"])
        flag_set(sFoH, FL_O)
    EV.update(ost=ev_ost, opub=ev_opub)
    at("attn3")
    V.free(accq, acck, accv, Qp, Kp, Vp, vPar, vMs, selS, selP, lg, mx, mt, Pz, Ps, Pp)
    stamp("attn")

    stv = V.quads(16, "stat partials")

    def so_st():
        A(f"s_lshl_b32 {sAO}, {sM3}, 12")
        A(f"s_add_u32 {sAO}, {sAO}, {WS_ST}")
    stl = act_loads(stv, so_st, 22)
    l_idle, l_join = "L_IDLE", "L_JOIN"

    def ev_x1chk():
        if IDLE:
            A.bg_flush()
            idle_state["wp"] = wp_done[0]
            idle_state["fired"] = set(fired)
            assert not A.bgq and "x1pub" in fired
            A.lock()
            A(f"s_cmp_ge_u32 {sLI}, 14")
            A(f"s_cbranch_scc1 {l_idle}")
            A.unlock()
        x1poll.check()
        stamp("x1polled")
        A.enqueue(sum(x1l[:4], []) + stl + sum(x1l[4:], []))
    EV["x1chk"] = ev_x1chk
    idle_state = {}
    wp_done = [0]
    barrier(vm=wod[3][-1])
    stamp("wolanded")
    for q in range(4):
        at(f"pre3_{q}")
        run(w_reads(vBN, WOS[q], 512, WP[q]))
        wp_done[0] = q + 1
    at("pre3_4")

    acc3 = [V.alloc(16, f"acc3{nb}") for nb in range(2)]
    vK = V.alloc(4, "mean,k0,k1,ir")
    csb = V.quads(16, "cs buf")
    csa = V.quads(8, "cs acc")
    g3t = acc[1]
    wfr = [V.quads(32, "wfr0"), V.quads(32, "wfr1")]
    vH2o, vCSa, vCSw, vCSl = va("h2 voff", "cs addr", "cs wr", "cs lane")
    vSel = vOnes
    if IDLE:
        vH2v = vL16
    else:
        vH2v = vH2o
        A(f"s_cmp_lt_u32 {sLI}, 14")
        A(f"s_cselect_b32 {sT0}, 0, {OOB}")
        A(f"v_add_u32 {vH2o}, {sT0}, {vL16}")
    A(f"v_xor_b32 {vT0}, {vL}, {vG}")
    A(f"v_and_b32 {vT0}, 1, {vT0}")
    A(f"v_subrev_u32 {vT0}, 1, {vT0}")
    for i in range(4):
        A(f"v_and_b32 {vSel[i]}, {vT0}, {vOnes[i]}")
    csacc = [csa[0:4], csa[4:8]]
    fill3 = deque([f"s_lshl_b32 {sT0}, {sW}, 8",
                   f"s_addk_i32 {sT0}, {CS3}",
                   f"v_add_u32 {vCSw}, {sT0}, {vI16}",
                   f"v_lshlrev_b32 {vCSl}, 2, {vL}",
                   f"v_lshlrev_b32 {vCSa}, 4, {vHalf}"])

    def x1_stats():
        o = [lambda: A.wait(vm=stl[-1])]
        for i in range(1, 4):
            for e in range(4):
                o.append(f"v_add_f32 {stv[e]}, {stv[e]}, {stv[4 * i + e]}")
        o += [f"s_lshl_b32 {sT1}, {sW}, 10",
              f"s_addk_i32 {sT1}, {STX}",
              f"v_add_u32 {vT0}, {sT1}, {vL16}",
              f"ds_write_b128 {vT0}, {stv[0:4]}",
              f"v_lshl_add_u32 {vT1}, {vM32}, 2, {sT1}"]
        for g in range(4):
            o.append(f"ds_read2_b32 {stv[4 + 2 * g:6 + 2 * g]}, {vT1} offset0:{g * 64} offset1:{g * 64 + 32}")
        o += [None] * 6
        for e in range(2):
            o += [f"v_add_f32 {stv[2 + e]}, {stv[8 + e]}, {stv[10 + e]}", f"v_add_f32 {stv[e]}, {stv[4 + e]}, {stv[6 + e]}"]
        o += [f"v_add_f32 {stv[0]}, {stv[0]}, {stv[2]}",
              f"v_add_f32 {stv[1]}, {stv[1]}, {stv[3]}",
              f"v_mul_f32 {vK[0]}, {f2u(1 / 512)}, {stv[0]}",
              f"v_mul_f32 {stv[1]}, {f2u(1 / 512)}, {stv[1]}",
              f"v_fma_f32 {stv[1]}, -{vK[0]}, {vK[0]}, {stv[1]}",
              f"v_max_f32 {stv[1]}, 0, {stv[1]}",
              f"v_add_f32 {stv[1]}, {f2u(EPS)}, {stv[1]}",
              f"v_rsq_f32 {stv[2]}, {stv[1]}",
              f"v_mul_f32 {vK[1]}, {sC[0]}, {stv[2]}",
              f"v_mul_f32 {stv[3]}, {stv[2]}, {stv[2]}",
              f"v_mul_f32 {stv[3]}, {stv[3]}, {stv[2]}",
              f"v_mul_f32 {vK[2]}, {sC[1]}, {stv[3]}",
              f"v_mul_f32 {vK[3]}, {stv[1]}, {stv[2]}"]
        return o

    def cs_reads(nb):
        return [f"ds_read_b128 {csb[4 * q:4 * q + 4]}, {vCSa} offset:{CSP + nb * 128 + q * 32}" for q in range(4)]

    def cs_sum():
        return [f"ds_read2st64_b32 {csb[0:2]}, {vCSl} offset0:{CS3 // 256} offset1:{CS3 // 256 + 1}",
                f"ds_read2st64_b32 {csb[2:4]}, {vCSl} offset0:{CS3 // 256 + 2} offset1:{CS3 // 256 + 3}",
                None, None, None,
                f"v_add_f32 {csb[2]}, {csb[2]}, {csb[3]}",
                f"v_add_f32 {csb[0]}, {csb[0]}, {csb[1]}",
                f"v_add_f32 {vT2}, {csb[0]}, {csb[2]}",
                f"ds_write_b32 {vCSl}, {vT2} offset:{CSP}"] + cs_reads(0)

    def gelu3(p, prime=None):
        at(f"g{p}_0")
        for nb in range(2):
            d = acc3[nb]
            u = lambda i: d[2 * i:2 * i + 2]
            g_ = lambda i: g3t[2 * i:2 * i + 2]
            A.wait(lg=A.lg_issued)
            for i in range(8):
                A(f"v_pk_fma_f32 {u(i)}, {csb[2 * i:2 * i + 2]}, {vK[0:2]}, {u(i)} op_sel_hi:[1,0,1] neg_lo:[0,1,0] neg_hi:[0,1,0]")
            if nb == 0:
                run(cs_reads(1))
            for i in range(8):
                A(f"v_pk_mul_f32 {g_(i)}, {u(i)}, {u(i)}")
            for i in range(8):
                A(f"v_pk_fma_f32 {g_(i)}, {g_(i)}, {vK[2:4]}, {vK[0:2]} op_sel:[0,0,1] op_sel_hi:[1,0,1]")
            for i in range(8):
                A(f"v_pk_mul_f32 {g_(i)}, {g_(i)}, {u(i)}")
            for i in range(16):
                A(f"v_exp_f32 {g3t[i]}, {g3t[i]}")
            for i in range(8):
                A(f"v_pk_fma_f32 {g_(i)}, {g_(i)}, {vK[2:4]}, {vK[2:4]} op_sel:[0,1,1] op_sel_hi:[1,1,1]")
            if nb == 1 and prime:
                prime["pre"]()
                run(prime["reads"])
                prime["tok"] = A.lgtok()
            for i in range(16):
                A(f"v_rcp_f32 {g3t[i]}, {g3t[i]}")
            for i in range(8):
                A(f"v_pk_mul_f32 {g_(i)}, {g_(i)}, {u(i)}")
            for i in range(8):
                A(f"v_cvt_pk_bf16_f32 {d[i]}, {g3t[2 * i]}, {g3t[2 * i + 1]}")
            at(f"g{p}_{2 * nb + 1}")
            if p == 1 and nb == 0:
                A(f"s_addk_i32 {sH2o}, 4096")
            A.lock()
            for c in range(2):
                if "h2st" in opt.get("drop", []):
                    h2tok[p] = A.vmtok()
                    continue
                h2tok[p] = A(f"buffer_store_dwordx4 {d[4 * c:4 * c + 4]}, {vH2v}, {srd['ws']}, {sH2o} offen offset:{(nb * 2 + c) * 1024} {opt.get('h2mode', 'sc1')}")
            A.unlock()
            at(f"g{p}_{2 * nb + 2}")

    opoll = Poll(sPoH, FL_O, vI16, vF[0])
    h2poll = [Poll(sPo2, FL_H2 + p * 256, vI7, vF[1]) for p in range(2)]
    h2tok = [None, None]
    h2q = dict(next=0, free=0, ok=0)

    def h2_pump():
        while h2q["next"] < min(h2q["free"], h2q["ok"]):
            A.enqueue(h2l[h2q["next"]])
            h2q["next"] += 1

    def ev_ochk():
        opoll.check()
        A.enqueue(sum(ol, []))

    def ev_h2pub(p):
        A.wait(vm=h2tok[p])
        flag_set(sFo2, FL_H2 + p * 256)

    def ev_h2chk(p):
        h2poll[p].check()
        h2q["ok"] = 7 * (p + 1)
        h2_pump()
    EV.update(oiss=opoll.issue, ochk=ev_ochk, h2apub=lambda: ev_h2pub(0), h2bpub=lambda: ev_h2pub(1),
              h2aiss=h2poll[0].issue, h2biss=h2poll[1].issue, h2achk=lambda: ev_h2chk(0), h2bchk=lambda: ev_h2chk(1))
    p3steps = [[], []]
    for p in range(2):
        for i in range(8):
            wb = wfr[i % 2]
            mf = stage_mfma(wb, acc3, actB[16 * i:16 * i + 16], zero=(i == 0, i == 0))
            if p == 0:
                mf = [lambda i=i: A.wait(vm=x1l[i][-1])] + mf
            if i < 2:
                mf = [f"{M16} {csacc[k % 2]}, {vSel}, {wb[4 * k:4 * k + 4]}, {0 if (i == 0 and k < 2) else csacc[k % 2]}" for k in range(8)] + mf
            stp = dict(reads=w_reads(vB3, sCB[p][i // 2], 1024, wb, extra=8192 + (i % 2) * 8192), mfma=mf)
            if i < 2:
                stp["k"] = 1.5
            if i == 0:
                def pre(p=p):
                    barrier(vm=w3d[p][3][-1])
                    if p == 0:
                        A.enqueue(sum(w3d[1], []) + w4d[0])
                stp["pre"] = pre

            def start(p=p, i=i):
                if p == 0 and i == 4:
                    fill3.extend(x1_stats())
                if i == 7:
                    barrier()
                    A.enqueue(sum(w4d[1 + 4 * p:5 + 4 * p], []))
                    fill3.extendleft(reversed(cs_sum()))

            def end(p=p, i=i):
                if i == 2:
                    run(fill3)
                    fill3.clear()
                    for nb in range(2):
                        A(f"ds_write2_b32 {vCSw}, {csacc[nb][0]}, {csacc[nb][1]} offset0:{nb * 32} offset1:{nb * 32 + 16}")
                if p == 1 and i >= 4:
                    h2q["free"] = i - 3
                    h2_pump()
                at(f"p3{'ab'[p]}{i}")
            stp["start"], stp["end"] = start, end
            p3steps[p].append(stp)
    for p in range(2):
        run_steps(p3steps[p], 3, fill=fill3, primed=p)
        run(fill3)
        fill3.clear()
        stamp(f"p3mm{p}")
        gelu3(p, p3steps[1][0] if p == 0 else None)
        stamp(f"gelu{p}")
    V.free(acc3, stv, vK, csb, csa, vH2o, vW3, vB3, wfr, vCSa, vCSw, vCSl)

    if IDLE:
        A.bg_close_group()
        A.label(l_join)
        main_ins, main_state = A.ins, (A.vm_issued, A.vm_done, A.lg_issued, A.lg_done, dict(A.pend), A.t, A.mfma_free, A.bg_next)
        A.ins = []
        A.lock()
        A.label(l_idle)
        between = fired - idle_state["fired"]
        assert {"ochk", "h2achk", "oiss", "h2aiss"} <= between and not ({"h2biss"} & between)
        A.vm_done, A.lg_done = A.vm_issued, A.lg_issued
        if opt.get("i3", 1):
            for k in range(I3EARLY, 7):
                i3(k, sT0, True)
        for q in range(idle_state["wp"], 4):
            run(w_reads(vBN, WOS[q], 512, WP[q]))
        if "ost" in between:
            run(store_pairs(pk8, WS_O))
        vTw, = va("idle touch")
        A(f"s_and_b32 {sT0}, {sR}, 17")
        A(f"s_lshr_b32 {sT1}, {sT0}, 4")
        A(f"s_and_b32 {sT0}, {sT0}, 1")
        A(f"s_mul_i32 {sT1}, {sT1}, {896 * 1024}")
        A(f"s_lshl2_add_u32 {sT0}, {sT0}, {sW}")
        A(f"s_lshl_b32 {sT0}, {sT0}, 13")
        A(f"s_add_u32 {sT0}, {sT0}, {sT1}")
        A(f"v_lshl_add_u32 {vTw}, {vL}, 7, {sT0}")
        for q in range(14):
            A(f"s_mov_b32 {sT0}, {(2 * (q % 7) + q // 7) << 16}")
            A(f"buffer_load_dword {vPF}, {vTw}, {srd['w4']}, {sT0} offen", nodef=True)
            if q == 1 and "opub" in between:
                A.raw("s_waitcnt vmcnt(2)")
                flag_set(sFoH, FL_O)
        V.free(vTw)
        A.raw("s_waitcnt lgkmcnt(0)")
        A("s_barrier")
        for q in range(9):
            for it in w4d[q]:
                if it.tok:
                    it.fn()
        opoll.issue()
        opoll.check()
        for it in sum(ol, []):
            if it.tok:
                it.fn()
        h2poll[0].issue()
        h2poll[0].check()
        for it in sum(h2l, []):
            if it.tok:
                it.fn()
        A.raw("s_waitcnt vmcnt(0)")
        A(f"s_branch {l_join}")
        A.unlock()
        idle_ins, A.ins = A.ins, main_ins
        A.vm_issued, A.vm_done, A.lg_issued, A.lg_done, A.pend, A.t, A.mfma_free, A.bg_next = main_state

    steps = []
    for n in range(18):
        q = n - 4
        if n < 4:
            stp = dict(reads=[], mfma=stage_mfma(WP[n], acc, actB[16 * n:16 * n + 16], zero=(False, n == 0)))
        else:
            mf = stage_mfma(WP[n % 4], acc, h2buf(q), acc1_first=(n == 17))
            if n == 17:
                mf = with_ex(mf, W4S[6])
            stp = dict(reads=w_reads(vBP, W4S[q % 9], 1024, WP[n % 4]), mfma=mf)

            def pre(q=q):
                barrier(vm=w4d[q][-1])
                if q >= 1 and q + 8 < 14:
                    A.enqueue(w4d[q + 8])
            stp["pre"] = pre

        def start(n=n):
            A.wait(vm=(ol[n] if n < 4 else h2l[n - 4])[-1])
            if n == 4:
                stamp("wo")
            if n == 16:
                A(f"v_lshlrev_b32 {vT2}, 10, {vM32}")
                A(f"v_lshl_add_u32 {vT2}, {vHalf}, 4, {vT2}")
                A(f"s_lshl_b32 {sT0}, {sMB}, 15")
                A(f"s_lshl1_add_u32 {sT1}, {sJ}, {sKH}")
                A(f"s_lshl_b32 {sT1}, {sT1}, 6")
                A(f"s_add_u32 {sT2}, {sT0}, {sT1}")

        def end(n=n):
            h2q["free"] = min(14, n + 5)
            h2_pump()
            at(f"s{n}")
        stp["start"], stp["end"] = start, end
        steps.append(stp)
    run_steps(steps, 3, depth=3)
    stamp("p4mm")

    ex_finish()
    for i in range(8):
        A(f"v_cvt_pk_bf16_f32 {pk8[i]}, {acc[0][2 * i]}, {acc[0][2 * i + 1]}")
    for c in range(2):
        A(f"v_permlane32_swap_b32 {pk8[4 * c]}, {pk8[4 * c + 2]}")
        A(f"v_permlane32_swap_b32 {pk8[4 * c + 1]}, {pk8[4 * c + 3]}")
    for c in range(2):
        A(f"buffer_store_dwordx4 {pk8[4 * c:4 * c + 4]}, {vT2}, {srd['out']}, {sT2} offen offset:{c * 32} {opt.get('outmode', '')}")
    assert not A.bgq
    if opt.get("stamps"):
        stamp("stored")
        A.wait_all()
        stamp("end")
        A(f"s_lshl2_add_u32 {sT0}, s2, {sW}")
        A(f"s_lshl_b32 {sT0}, {sT0}, 8")
        A(f"s_add_u32 {sT0}, {sT0}, {WS_TS}")
        A(f"v_lshlrev_b32 {vT0}, 2, {vL}")
        A(f"buffer_store_dword {vTS}, {vT0}, {srd['ws']}, {sT0} offen")
    A.label("L_END")
    A("s_endpgm")
    if IDLE:
        A.ins += idle_ins
    for t in A.ool:
        A.raw(t)
    assert fired == set(PLACE), set(PLACE) - fired
    A.label("L_CODE_END")
    nops = A.pad_hazards()
    info = dict(nops=nops, autowaits=A.autowaits, n=len([i for i in A.ins if i.op]), vhigh=V.high, ahigh=AG.high, shigh=S.high, est=A.t, stamps=stamps)
    return A, info


HEADER = """; Fused persistent kernel (generated by dev/gen.py).
; Kernarg: A_x, A_wqkv, A_wo, B_x, B_w1, B_w2, B_w3, B_w4, d_out, d_debug, d_ws
; @launch grid=(256,1,1) block=(256,1,1) lds=%d
.amdgcn_target "amdgcn-amd-amdhsa--gfx950"
.text
.globl %s
.p2align 8
.type %s,@function
%s:
"""
FOOTER = """
.section .rodata,"a"
.p2align 6
.amdhsa_kernel %s
  .amdhsa_next_free_vgpr 512
  .amdhsa_next_free_sgpr 102
  .amdhsa_accum_offset 256
  .amdhsa_group_segment_fixed_size 0
  .amdhsa_kernarg_size 88
  .amdhsa_user_sgpr_count 2
  .amdhsa_user_sgpr_kernarg_segment_ptr 1
  .amdhsa_system_sgpr_workgroup_id_x 1
.end_amdhsa_kernel
"""


def emit(path, opt):
    A, info = build(opt)
    if opt.get("align", 1):
        info["align"] = align_pass(A, HEADER % (LDS_BYTES, KNAME, KNAME, KNAME), FOOTER % KNAME)
    with open(path, "w") as f:
        f.write(HEADER % (LDS_BYTES, KNAME, KNAME, KNAME))
        f.write(A.text())
        f.write(FOOTER % KNAME)
    return info


if __name__ == "__main__":
    import json
    opt = {}
    path = sys.argv[1]
    for a in sys.argv[2:]:
        if a.endswith(".json"):
            opt.update(json.load(open(a)))
            continue
        k, _, v = a.partition("=")
        opt[k] = json.loads(v) if v else True
    info = emit(path, opt)
    print({k: v for k, v in info.items() if k != "stamps"})
    if info["stamps"]:
        json.dump(info["stamps"], open(path + ".stamps.json", "w"))
```

```python
import sys, struct
from collections import deque
from asmlib import *

KNAME = "parallel_sum__sliding_local_dilated__mixer_s_mlp__prompt_kernel"
MB = 1 << 20
WS_H, WS_O, WS_X1, WS_H2, WS_ST, WS_FL, WS_TS, WS_SZ = 0, 2 * MB, 4 * MB, 6 * MB, 13 * MB, 13 * MB + 512 * 1024, 14 * MB, 15 * MB
FL_H, FL_O, FL_X1, FL_H2 = 0, 256, 512, 768
MR, MH, MEAN, RSTD, CS3, STX, CSP = 0, 768, 1536, 1920, 2304, 3328, 7424
XB, XR = 8192, 20480
RING = XB + 4 * XR
QS = 24576
L = [8192 + 16384 * i for i in range(9)]
LDS_BYTES = 163840
OOB = 0x40000000
EPS = 1e-5
LOG2E = 1.4426950408889634
C0 = -2.0 * 0.7978845608028654 * LOG2E
C1 = C0 * 0.044715
M16 = "v_mfma_f32_16x16x32_bf16"
M32 = "v_mfma_f32_32x32x16_bf16"
MA = "v_mfma_f32_16x16x16_bf16"
KARG = dict(x=0, qkv=8, wo=16, w1=32, w2=40, w3=48, w4=56, out=64, dbg=72, ws=80)
SIZE = dict(x=2 * MB, qkv=512 * 3072, wo=512 * 1024, w1=512 * 1024, w2=512 * 1024, w3=512 * 3584, w4=1792 * 1024,
            out=2 * MB, dbg=256, ws=WS_SZ)


def f2u(x):
    return "0x%08x" % struct.unpack("<I", struct.pack("<f", x))[0]


def build(opt):
    A = Asm()
    A.bg_gap = opt.get("gap", 64)
    A.topup = opt.get("topup", 10)
    V, AG, S = A.v, A.a, A.s
    stamps = []
    IDLE = opt.get("idle", 1)

    def stamp(name):
        if not opt.get("stamps") or (opt["stamps"] == "min" and name not in ("start", "end")):
            return
        A.raw(f"s_memtime {sTS}")
        A.raw("s_waitcnt lgkmcnt(0)")
        A.lg_done = A.lg_issued
        A.lock()
        A(f"v_writelane_b32 {vTS}, {sTS[0]}, {len(stamps)}")
        if name in ("start", "end"):
            A.raw(f"s_memrealtime {sTS}")
            A.raw("s_waitcnt lgkmcnt(0)")
            A(f"v_writelane_b32 {vTS}, {sTS[0]}, {62 if name == 'start' else 63}")
        A.unlock()
        stamps.append(f"{name}@{A.t}")

    def do(it):
        if it is not None:
            it() if callable(it) else A(it)

    def run(lst):
        for it in lst:
            do(it)

    def weave(main, side, k, fill=None):
        side = side if isinstance(side, deque) else deque(side)
        acc_k = 0.0
        for m in main:
            if callable(m):
                m()
                continue
            A(m)
            acc_k += k
            while acc_k >= 1:
                acc_k -= 1
                if side:
                    do(side.popleft())
            while fill and A.t + 4 <= A.mfma_free:
                it = fill.popleft()
                if it is None:
                    break
                do(it)
        return side

    def barrier(vm=None):
        A.wait(vm=vm)
        A.wait(lg=A.lg_issued)
        A("s_barrier")

    PLACE = dict(q1="hepi0", q2="hepi2", hpub="qkv4", hiss="qkv10", hchk="qkv12",
                 x1pub="attn2", x1iss="attn3", x1chk="pre3_2", ost="p3a7", opub="g0_4", oiss="p3b4", ochk="p3b6",
                 h2apub="p3b6", h2aiss="g1_1", h2achk="g1_3", h2bpub="s4", h2biss="s7", h2bchk="s8")
    PLACE.update(opt.get("place", {}))
    GAPS = opt.get("gaps", {})
    EV = {}
    fired = set()

    def at(point):
        if point in GAPS:
            A.bg_gap = GAPS[point]
        for name, pt in PLACE.items():
            if pt == point:
                EV[name]()
                fired.add(name)
        if point.rstrip("0123456789") in opt.get("fine", []):
            stamp(point)

    def group(fns, dl):
        items = [BgItem(f) for f in fns]
        for it in items:
            it.dl = dl
        for it in items[1:]:
            it.cont = True
        return items

    def sa(*names):
        return [S.alloc(1, n) for n in names]

    def va(*names):
        return [V.alloc(1, n) for n in names]

    srd = {n: S.alloc(4, "srd_" + n, 4) for n in KARG}
    sRB, sJ, sCL, sLI, sW, sKH, sMH, sTILE, sT0, sT1, sT2, sT3, sTO = sa(*"rb j cl li w kh mh tile t0 t1 t2 t3 timeout".split())
    sFLB, sSO, sAO, sM0W, sR = sa("flagbase", "bg soff", "bg act soff", "w*4096", "r")
    sC = S.alloc(2, "c0c1", 2)
    sTS = S.alloc(2, "ts", 2)
    s64 = S.alloc(2, "tmp64", 2)
    vTS, vL, vM16, vG, vL16, vT0, vT1, vT2, vT3, vPF = va(*"ts l m16 g l16 t0 t1 t2 t3 pf".split())
    vXD = va(*[f"xd{i}" for i in range(5)])
    sXreg = sa(*[f"xreg{n}" for n in range(4)])
    sXk = sa(*[f"xk{n}" for n in range(4)])
    sXW, sRQ, sR2 = sa("XB + w*5120", "qkv rot*256", "w2/wo rot")
    ROTQ, ROT2, ROT3 = opt.get("rotq", 0), opt.get("rot2", 0), opt.get("rot3", 0)
    ROTA, ROT4 = opt.get("rota", 0), opt.get("rot4", 0)

    if opt.get("stamps"):
        A.raw(f"s_memtime {sC}")
    if opt.get("padto"):
        A.raw(f"s_memrealtime {sTS}")
    for n in ("x", "w1"):
        A(f"s_load_dwordx2 {srd[n][0:2]}, s[0:1], {KARG[n]}")
    A(f"s_getpc_b64 {s64}")
    A(f"v_lshlrev_b32 {vT0}, 5, v0")
    A("s_cmp_ge_u32 s2, 256")
    A("s_cbranch_scc1 L_END")
    A(f"global_load_dword {vPF}, {vT0}, {s64}", nodef=True)
    A(f"v_lshrrev_b32 {vT1}, 6, v0")
    A(f"s_lshr_b32 {sR}, s2, 3")
    if opt.get("jx"):
        A(f"s_xor_b32 {sR}, {sR}, {opt['jx']}")
    A(f"s_and_b32 {sT1}, s2, 7")
    A(f"v_readfirstlane_b32 {sW}, {vT1}")
    A(f"s_lshr_b32 {sT0}, {sR}, 3")
    A(f"s_lshl2_add_u32 {sRB}, {sT1}, {sT0}")
    if ROTQ:
        A(f"s_lshl_b32 {sRQ}, {sT0}, 8")
        if ROTQ == 2:
            A(f"s_and_b32 {sT2}, {sR}, 7")
            A(f"s_cmp_eq_u32 {sT2}, 3")
            A(f"s_cselect_b32 {sRQ}, {sRQ}, 0")
    A(f"s_add_u32 {sT0}, {sT0}, {sR}")
    A(f"v_and_b32 {vM16}, 15, v0")
    A(f"v_bfe_u32 {vG}, v0, 4, 2")
    A(f"s_and_b32 {sT0}, {sT0}, 3")
    A(f"s_lshl_b32 {sXk[0]}, {sT0}, 8")
    A(f"s_mul_i32 {sT2}, {sW}, 20")
    A(f"s_lshl_b32 {sT3}, {sRB}, 6")
    A(f"s_sub_u32 {sT3}, {sT3}, 14")
    A(f"v_add_u32 {vT2}, {sT2}, {vG}")
    A(f"v_lshlrev_b32 {vT1}, 1, {vT2}")
    A(f"v_bitop3_b32 {vT1}, {vT1}, {vM16}, 15 bitop3:0x28")
    A(f"v_add_lshl_u32 {vT2}, {sT3}, {vT2}, 10")
    A(f"v_lshl_add_u32 {vXD[0]}, {vT1}, 4, {vT2}")
    def xreg(n):
        if ROTQ:
            A(f"s_xor_b32 {sXreg[n]}, {sXk[n]}, {sRQ}")
            A(f"s_mulk_i32 {sXreg[n]}, 80")
        else:
            A(f"s_mul_i32 {sXreg[n]}, {sXk[n]}, 80")
    xreg(0)
    A(f"s_lshl_b32 {sXW}, {sT2}, 8")
    A(f"s_addk_i32 {sXW}, {XB}")
    A(f"s_mov_b32 {srd['x'][3]}, 0x20000")
    A(f"s_lshl_b32 {srd['x'][2]}, {srd['x'][3]}, 4")
    A(f"v_xor_b32 {vT1}, 0x80, {vXD[0]}")
    if opt.get("stamps"):
        A.raw(f"s_memtime {sTS}")
        A(f"v_mov_b32 {vTS}, 0")
    A.raw("s_waitcnt lgkmcnt(0)")
    if opt.get("stamps"):
        A(f"v_writelane_b32 {vTS}, {sC[0]}, 0")
        A(f"v_writelane_b32 {vTS}, {sTS[0]}, 1")
        stamps += ["entry@0", "prewait@0"]
    stamp("start")
    xd = []
    for n in range(4):
        fns = []
        for i in range(5):
            def f(n=n, i=i):
                if i == 0:
                    A(f"s_add_u32 m0, {sXreg[n]}, {sXW}")
                else:
                    A(f"s_addk_i32 m0, 0x400")
                if n == 0 and i:
                    A(f"v_add_u32 {vXD[i]}, {4096 * i}, {vT1 if i % 2 else vXD[0]}")
                return A(f"buffer_load_dwordx4 {vXD[i]}, {srd['x']}, {sXk[n]} offen lds")
            fns.append(f)
        xd.append(group(fns, n))
    A.enqueue(xd[0])
    A.bg_flush()
    for n in KARG:
        if n not in ("x", "w1"):
            A(f"s_load_dwordx2 {srd[n][0:2]}, s[0:1], {KARG[n]}")
    vWB = va(*[f"wb{i}" for i in range(4)])
    vWA1, vWA3, vSB, vR8 = va("wa1", "wa3", "sb16", "l>>3")
    A(f"v_bfe_u32 {vR8}, v0, 3, 3")
    A(f"v_lshlrev_b32 {vT0}, 2, {vG}")
    A(f"v_bitop3_b32 {vT0}, {vT0}, v0, 7 bitop3:0x28")
    A(f"v_lshlrev_b32 {vSB}, 4, {vT0}")
    A(f"s_and_b32 {sJ}, {sR}, 7")
    A(f"s_lshl_b32 {sM0W}, {sW}, 12")
    A(f"s_lshl_b32 {sT1}, {sJ}, 7")
    A(f"s_lshl3_add_u32 {sT0}, {sM0W}, {sT1}")
    A(f"v_lshl_add_u32 {vT0}, {vR8}, 10, {vSB}")
    A(f"v_add_u32 {vWB[0]}, {sT0}, {vT0}")
    A(f"v_xor_b32 {vT1}, 32, {vWB[0]}")
    A(f"v_add_u32 {vWA1}, 7168, {vT1}")
    A(f"v_add_u32 {vWB[2]}, {2 * 7168}, {vWB[0]}")
    A(f"v_add_u32 {vWA3}, {3 * 7168}, {vT1}")
    A(f"s_mov_b32 {srd['w1'][3]}, {srd['x'][3]}")
    A(f"s_lshl_b32 {srd['w1'][2]}, {srd['x'][3]}, 2")

    def dma_chunk(name, voffs, so, slot, dl):
        fns = []
        for i in range(4):
            def f(i=i):
                if i == 0:
                    so()
                    A(f"s_add_u32 m0, {sM0W}, {slot}")
                if name in opt.get("drop", []):
                    return A.vmtok()
                return A(f"buffer_load_dwordx4 {voffs[i]}, {srd[name]}, {sSO} offen offset:{i * 1024} lds")
            fns.append(f)
        return group(fns, dl)

    W1S = [RING + 8192 + 16384 * c for c in range(4)]
    w1d = [dma_chunk("w1", (vWB[0], vWA1, vWB[2], vWA3), (lambda n=n: A(f"s_lshl_b32 {sSO}, {sXk[n]}, 9")), W1S[n], n + 0.5) for n in range(4)]
    A.enqueue(w1d[0])
    A.bg_flush()
    for n in range(1, 4):
        A(f"s_add_u32 {sXk[n]}, {sXk[0]}, {256 * n}")
        A(f"s_and_b32 {sXk[n]}, {sXk[n]}, 0x300")
        xreg(n)
        A.enqueue(xd[n] + w1d[n])
        if n == 1:
            for _ in range(opt.get("cap0", 12) - A.vm_issued):
                A.bg_emit()
            A.bg_limit = A.vm_issued
    stamp("burst")
    A(f"s_lshl2_add_u32 {sT0}, {sR}, {sW}")
    A(f"s_lshl_b32 {sT0}, {sT0}, 8")
    A(f"s_addk_i32 {sT0}, 0x2000")
    A(f"v_and_b32 {vT0}, 1, v0")
    A(f"v_lshl_add_u32 {vT0}, {vT0}, 7, {sT0}")
    A(f"v_min_u32 {vT0}, L_CODE_END-{KNAME}-256, {vT0}")
    A(f"global_load_dword {vPF}, {vT0}, {s64}", nodef=True)
    A(f"v_and_b32 {vL}, 63, v0")
    A(f"v_lshlrev_b32 {vL16}, 4, {vL}")
    A(f"s_lshr_b32 {sCL}, {sRB}, 1")
    A(f"s_and_b32 {sLI}, {sR}, 15")
    A.raw("s_waitcnt lgkmcnt(0)")
    for n in KARG:
        if n not in ("x", "w1"):
            A(f"s_mov_b32 {srd[n][2]}, {SIZE[n]}")
            A(f"s_mov_b32 {srd[n][3]}, {srd['x'][3]}")
    vL0, vOne, vTag, vAr = va("lane0off", "one", "tag", "arr voff")
    vZ4 = V.alloc(4, "zero4")
    sLD, sARO = sa("leader? 0 : OOB", "cleared-word off")
    A(f"v_mov_b64 {vZ4[0:2]}, 0")
    A(f"v_mov_b64 {vZ4[2:4]}, 0")
    A(f"s_lshl_b32 {sFLB}, {sCL}, 11")
    A(f"s_add_u32 {sFLB}, {sFLB}, {WS_FL}")
    A(f"s_cmp_eq_u32 {sLI}, 0")
    A(f"s_cselect_b32 {sLD}, 0, {OOB}")
    A(f"s_lshl_b32 {sT0}, {sW}, 9")
    A(f"s_add_u32 {sT0}, {sT0}, {sFLB}")
    A(f"v_lshl_add_u32 {vT0}, {vL}, 3, {sLD}")
    A(f"buffer_store_dwordx2 {vZ4[0:2]}, {vT0}, {srd['ws']}, {sT0} offen sc1")
    clear_pos = A.vm_issued
    A(f"s_and_b32 {sT0}, {sR}, 16")
    A(f"v_and_b32 {vT0}, 3, {vL}")
    A(f"v_lshl_add_u32 {vAr}, {vT0}, 2, {sT0}")
    A(f"buffer_load_dword {vPF}, {vAr}, {srd['dbg']}, 0 offen sc1", nodef=True)
    A(f"v_min_u32 {vL0}, 1, {vL}")
    A(f"v_lshlrev_b32 {vL0}, 30, {vL0}")
    A(f"v_mov_b32 {vOne}, 1")
    A(f"s_mov_b32 {sTO}, {opt.get('timeout', 200000)}")
    A(f"s_getreg_b32 {sT0}, hwreg(HW_REG_XCC_ID)")
    A(f"s_and_b32 {sT0}, {sT0}, 7")
    A(f"s_and_b32 {sT1}, s2, 7")
    A(f"s_lshl3_add_u32 {sT0}, {sT0}, {sT1}")
    A(f"s_add_u32 {sT0}, {sT0}, 1")
    A(f"s_mul_i32 {sT0}, {sT0}, 0x01010101")
    A(f"v_mov_b32 {vTag}, {sT0}")
    A(f"s_lshl_b32 {sARO}, {sCL}, 2")

    def announce():
        A(f"buffer_store_byte {vTag}, {vL0}, {srd['dbg']}, {sR} offen")

    def announce_cleared():
        A(f"s_cmp_eq_u32 {sW}, 0")
        A(f"s_cselect_b32 {sT2}, {sLD}, {OOB}")
        A(f"v_or_b32 {vT3}, {sT2}, {vL0}")
        A(f"buffer_store_dword {vOne}, {vT3}, {srd['dbg']}, {sARO} offen offset:128 sc1")
        S.free(sLD)

    tch, vTch = [], []
    if opt.get("touch", 1):
        A(f"s_lshl2_add_u32 {sT0}, s2, {sW}")
        for nl in (12, 14, 4):
            vt, = va(f"touch{nl}")
            vTch.append(vt)
            A(f"s_mul_i32 {sT1}, {sT0}, {nl * 128}")
            A(f"v_min_u32 {vT0}, {nl - 1}, {vL}")
            A(f"v_lshl_add_u32 {vt}, {vT0}, 7, {sT1}")
        for nm, vt in (("qkv", vTch[0]), ("w2", vTch[2]), ("w3", vTch[1]), ("wo", vTch[2]), ("w4", vTch[1])):
            if nm in opt.get("notouch", ["w4"] if IDLE else []):
                continue
            fn = lambda nm=nm, vt=vt: A(f"buffer_load_dword {vPF}, {vt}, {srd[nm]}, 0 offen", nodef=True)
            dl = opt.get("touchdl", {}).get(nm, 8)
            if isinstance(dl, str):
                PLACE["t" + nm] = dl
                EV["t" + nm] = fn
            elif dl < 1:
                fn()
            else:
                tch += group([fn], dl)
        A.enqueue(tch)

    vXA = va(*[f"xa{t}" for t in range(4)])
    vXH = va(*[f"xh{t}" for t in range(4)])
    vXS = va(*[f"xs{t}" for t in range(4)])
    vHr, = va("h stat addr")

    def xaddr(dst, rho):
        return [f"v_lshlrev_b32 {vT1}, 1, {rho}",
                f"v_bitop3_b32 {vT1}, {vT1}, {vG}, 15 bitop3:0x28",
                f"v_lshl_add_u32 {vT1}, {rho}, 4, {vT1}",
                f"v_lshlrev_b32 {vT1}, 4, {vT1}",
                f"v_add_u32 {dst[0]}, {XB}, {vT1}"] + [f"v_xor_b32 {dst[t]}, {t * 64}, {dst[0]}" for t in range(1, 4)]

    A(f"s_lshl_b32 {sT0}, {sJ}, 2")
    A(f"s_and_b32 {sT0}, {sT0}, 24")
    A(f"s_lshr_b32 {sT0}, 0x100c0f0d, {sT0}")
    A(f"s_and_b32 {sT0}, {sT0}, 31")
    A(f"v_add_u32 {vT0}, {sT0}, {vM16}")
    A(f"v_lshlrev_b32 {vHr}, 3, {vT0}")
    run(xaddr(vXS, vT0))
    vW1A, vWQA, vTB = va("w1a", "wqa", "tr base")
    A(f"v_and_b32 {vT0}, 3, {vL}")
    A(f"v_lshlrev_b32 {vT0}, 3, {vT0}")
    A(f"v_and_b32 {vT1}, 8, {vL}")
    A(f"v_lshl_add_u32 {vT0}, {vT1}, 3, {vT0}")
    A(f"v_and_b32 {vT1}, 16, {vL}")
    A(f"v_lshl_add_u32 {vT0}, {vT1}, 1, {vT0}")
    A(f"v_and_b32 {vT1}, 12, {vL}")
    A(f"v_lshl_add_u32 {vTB}, {vT1}, 5, {vT0}")
    A(f"s_lshl_b32 {sT0}, {sW}, 5")
    A(f"v_xor_b32 {vT0}, {sT0}, {vTB}")
    A(f"v_lshl_add_u32 {vW1A}, {vG}, 10, {vT0}")
    A(f"v_add_u32 {vW1A}, {W1S[0]}, {vW1A}")
    A(f"v_mul_u32_u24 {vT2}, 3072, {vG}")
    A(f"v_add_u32 {vWQA}, {vT2}, {vT0}")
    A(f"v_add_u32 {vWQA}, {RING}, {vWQA}")
    vOnes = V.alloc(4, "ones")
    A(f"v_mov_b32 {vOnes[0]}, 0x3f803f80")
    A(f"v_mov_b32 {vOnes[1]}, {vOnes[0]}")
    A(f"v_mov_b64 {vOnes[2:4]}, {vOnes[0:2]}")
    A(f"ds_write_b128 {vZ4[0]}, {vZ4} offset:{MR}")
    A(f"ds_write_b64 {vZ4[0]}, {vZ4[0:2]} offset:{MEAN}")
    A(f"ds_write_b64 {vZ4[0]}, {vZ4[0:2]} offset:{RSTD}")
    sacc = V.alloc(10, "stat acc")
    for i in range(5):
        A(f"v_mov_b64 {sacc[2 * i:2 * i + 2]}, 0")
    vWQ = va("wq0", "wq1")
    sQM, sHO = sa("w*6144", "tile off (h/o)")
    A(f"s_lshl_b32 {sT0}, {sW}, 4")
    A(f"v_add_u32 {vT0}, {sT0}, {vR8}")
    A(f"v_mul_u32_u24 {vT0}, 3072, {vT0}")
    A(f"s_lshl_b32 {sT1}, {sJ}, 7")
    A(f"v_add3_u32 {vWQ[0]}, {vT0}, {sT1}, {vSB}")
    A(f"v_xor_b32 {vT1}, 32, {vWQ[0]}")
    A(f"v_add_u32 {vWQ[1]}, {8 * 3072}, {vT1}")
    A(f"s_mul_i32 {sQM}, {sW}, 6144")
    A(f"v_add_u32 {vT0}, 14, {vM16}")
    run(xaddr(vXA, vT0))
    A(f"v_add_u32 {vT0}, 78, {vM16}")
    A(f"v_subrev_u32 {vT2}, 80, {vT0}")
    A(f"v_min_u32 {vT0}, {vT0}, {vT2}")
    run(xaddr(vXH, vT0))
    A(f"s_mov_b32 {sC[0]}, {f2u(C0)}")
    A(f"s_mov_b32 {sC[1]}, {f2u(C1)}")
    A(f"s_lshl4_add_u32 {sT0}, {sRB}, {sJ}")
    A(f"s_lshl2_add_u32 {sT0}, {sT0}, {sW}")
    A(f"s_lshl_b32 {sHO}, {sT0}, 10")
    vF = V.alloc(2, "flagval")
    stamp("setup")

    def run_steps(steps, k, fill=None, depth=1, primed=0, tail=None):
        for d in range(primed, depth):
            if steps[d].get("pre"):
                steps[d]["pre"]()
            run(steps[d]["reads"])
            steps[d]["tok"] = A.lgtok()
        for n, stp in enumerate(steps):
            if not stp.get("nowait"):
                A.wait(lg=stp["tok"])
            side = []
            nx = steps[n + depth] if n + depth < len(steps) else (tail if n + depth == len(steps) else None)
            if nx:
                if nx.get("pre"):
                    nx["pre"]()

                def mark(nx=nx):
                    nx["tok"] = A.lgtok()
                side = list(nx["reads"]) + [mark]
            if stp.get("start"):
                stp["start"]()
            side = weave(stp["mfma"], side, stp.get("k", k), fill)
            if stp.get("post"):
                side = weave(stp["post"], side, 0.5)
            run(side)
            if stp.get("end"):
                stp["end"]()

    sFAST, = sa("fast")

    def flag_set(sreg, imm):
        t = f"buffer_store_dword {vOne}, {vL0}, {srd['ws']}, {sreg} offen offset:{imm}"
        l1, l2 = A.newlabel("SAFE"), A.newlabel("STD")
        A.lock()
        A(f"s_cmp_eq_u32 {sFAST}, 0")
        A(f"s_cbranch_scc1 {l1}")
        A(t)
        A.label(l2)
        A.unlock()
        A.ool += [f"{l1}:", t + " sc1", f"s_branch {l2}"]

    class Poll:
        def __init__(self, sreg, imm, vidx, dst):
            self.load = f"buffer_load_dword {dst}, {vidx}, {srd['ws']}, {sreg} offen offset:{imm} sc1"
            self.dst = dst

        def issue(self):
            self.tok = A(self.load)

        def check(self):
            A.wait(vm=self.tok)
            lab, retry, done = A.newlabel("SPIN"), A.newlabel("RETRY"), A.newlabel("DONE")
            A.lock()
            A.label(lab)
            A(f"v_cmp_ne_u32 vcc, 1, {self.dst}")
            A("s_nop 0")
            A(f"s_cbranch_vccnz {retry}")
            A.label(done)
            A.unlock()
            A.ool += [f"{retry}:", self.load, "s_waitcnt vmcnt(0)", f"s_sub_u32 {sTO}, {sTO}, 1", f"s_cbranch_scc0 {lab}",
                      f"s_mov_b32 {sTO}, 0", f"s_branch {done}"]

    arr = {}

    def arrival_issue():
        arr["load"] = f"buffer_load_dword {vF[0]}, {vAr}, {srd['dbg']}, 0 offen sc1"
        arr["tok"] = A(arr["load"])

    def arrival_check():
        A.wait(vm=arr["tok"])
        retry, r2, done = A.newlabel("ARETRY"), A.newlabel("ASAFE"), A.newlabel("ADONE")
        A.lock()
        A(f"v_cmp_ne_u32 vcc, {vTag}, {vF[0]}")
        A(f"s_mov_b32 {sFAST}, {0 if opt.get('forcesafe') else 1}")
        A(f"s_cbranch_vccnz {retry}")
        A.label(done)
        A.unlock()
        A.ool += [f"{retry}:", f"s_mov_b32 {sT3}, {opt.get('arrtries', 20)}", f"{retry}_L:", arr["load"], "s_waitcnt vmcnt(0)",
                  f"v_cmp_ne_u32 vcc, {vTag}, {vF[0]}", "s_nop 1", f"s_cbranch_vccz {done}",
                  f"s_sub_u32 {sT3}, {sT3}, 1", f"s_cbranch_scc0 {retry}_L",
                  f"s_mov_b32 {sFAST}, 0",
                  f"{r2}:", f"buffer_load_dword {vF[0]}, {vZ4[0]}, {srd['dbg']}, {sARO} offen offset:128 sc1", "s_waitcnt vmcnt(0)",
                  f"v_cmp_ne_u32 vcc, 1, {vF[0]}", "s_nop 1", f"s_cbranch_vccz {done}",
                  f"s_sub_u32 {sTO}, {sTO}, 1", f"s_cbranch_scc0 {r2}", f"s_mov_b32 {sTO}, 0", f"s_branch {done}"]
        A(f"v_lshlrev_b32 {vT3}, 7, {vM16}")
        A(f"buffer_load_dword {vPF}, {vT3}, {srd['ws']}, {sFLB} offen sc1", nodef=True)

    def dma_qkv(s):
        base = RING + QS * (s % 3)
        fns = []
        for i in range(2):
            for g3 in range(3):
                def f(i=i, g3=g3):
                    if i == 0 and g3 == 0:
                        if ROTQ:
                            A(f"s_xor_b32 {sSO}, {sRQ}, {s << 7}")
                            A(f"s_mulk_i32 {sSO}, {64 * 3072 // 128}")
                        else:
                            A(f"s_mov_b32 {sSO}, {s * 64 * 3072}")
                        A(f"s_add_u32 m0, {sQM}, {base}")
                    elif g3 == 0:
                        A(f"s_addk_i32 m0, 3072")
                    if "qkv" in opt.get("drop", []):
                        return A.vmtok()
                    return A(f"buffer_load_dwordx4 {vWQ[i]}, {srd['qkv']}, {sSO} offen offset:{g3 * 1024} lds")
                fns.append(f)
        return group(fns, 10 + s)

    def act_loads(dst, so, dl, nm=""):
        fns = []
        for T in range(4):
            def f(T=T):
                if T == 0:
                    so()
                if "act" in opt.get("drop", []) or nm in opt.get("drop", []):
                    return A.vmtok()
                return A(f"buffer_load_dwordx4 {dst[4 * T:4 * T + 4]}, {vL16}, {srd['ws']}, {sAO} offen offset:{T * 1024} sc1")
            fns.append(f)
        return group(fns, dl)

    actB = AG.alloc(128, "actB")
    WP = [AG.alloc(32, f"WP{i}") for i in range(4)]
    XF = [actB[0:64], actB[64:128]]
    sbufs = [V.quads(20, "stat buf0"), V.quads(20, "stat buf1")]
    vXT = va(*[f"xt{t}" for t in range(4)])
    vSt, = va("stat rd addr")
    acch = V.alloc(16, "acch")
    csh = V.alloc(4, "csh")
    wf = [[WP[p][4 * g:4 * g + 4] for g in range(4)] for p in range(2)]
    qd = [dma_qkv(s) for s in range(8)]

    def dots(n):
        sb = sbufs[n % 2]
        o = []
        for i in range(5):
            for e in range(4):
                o += [f"v_dot2c_f32_bf16 {sacc[2 * i]}, {sb[4 * i + e]}, {vOnes[0]}",
                      f"v_dot2c_f32_bf16 {sacc[2 * i + 1]}, {sb[4 * i + e]}, {sb[4 * i + e]}"]
        return o
    fin = []
    for sh in (8, 4, 2, 1):
        for i in range(10):
            fin.append(f"v_add_f32_dpp {sacc[i]}, {sacc[i]}, {sacc[i]} row_ror:{sh} row_mask:0xf bank_mask:0xf")
    st = sbufs[0]
    for i in range(1, 4):
        for e in range(2):
            fin.append(f"v_mov_b32_dpp {sacc[e]}, {sacc[2 * i + e]} quad_perm:[0,1,2,3] row_mask:0xf bank_mask:0x{1 << i:x}")
    fin += [f"s_mov_b32 {s64[0]}, 0x00020002", f"s_mov_b32 {s64[1]}, {s64[0]}",
            f"v_cndmask_b32 {sacc[0]}, {sacc[0]}, {sacc[8]}, {s64}",
            f"v_cndmask_b32 {sacc[1]}, {sacc[1]}, {sacc[9]}, {s64}",
            f"v_mul_f32 {st[0]}, {f2u(1 / 512)}, {sacc[0]}",
            f"v_mul_f32 {st[5]}, {f2u(1 / 512)}, {sacc[1]}",
            f"v_fma_f32 {st[4]}, -{st[0]}, {st[0]}, {st[5]}",
            f"v_max_f32 {st[4]}, 0, {st[4]}",
            f"v_add_f32 {st[5]}, {f2u(EPS)}, {st[4]}",
            f"v_rsq_f32 {st[1]}, {st[5]}",
            f"v_mov_b32 {st[2]}, {st[0]}",
            f"v_mul_f32 {st[5]}, {st[1]}, {st[1]}",
            f"v_fmaak_f32 {st[5]}, {st[4]}, {st[5]}, {f2u(EPS)}",
            f"v_rsq_f32 {st[5]}, {st[5]}",
            f"ds_write_b64 {vT2}, {st[0:2]} offset:{MR}",
            f"v_mul_f32 {st[3]}, {st[1]}, {st[5]}",
            f"ds_write_b32 {vT3}, {st[0]} offset:{MEAN}",
            f"ds_write_b32 {vT3}, {st[1]} offset:{RSTD}",
            f"ds_write_b64 {vT2}, {st[2:4]} offset:{MH}"]
    A(f"v_and_b32 {vT0}, 12, {vL}")
    A(f"v_cmp_eq_u32 vcc, 1, {vM16}")
    A(f"s_mul_i32 {sT0}, {sW}, 20")
    A(f"v_cndmask_b32 {vT0}, {vT0}, 16, vcc")
    A(f"s_add_u32 {sT0}, {sT0}, 2")
    A(f"v_add3_u32 {vT0}, {vT0}, {vG}, {sT0}")
    A(f"v_lshlrev_b32 {vT2}, 3, {vT0}")
    A(f"v_lshlrev_b32 {vT3}, 2, {vT0}")

    steps = []
    fill1 = deque()
    for c in range(4):
        p = c % 2
        rd, mf = [f"v_add_u32 {vXT[t]}, {sXreg[c]}, {vXS[t]}" for t in range(4)], []
        st_rd = [f"s_add_u32 {sT0}, {sXreg[c]}, {sXW}", f"v_add_u32 {vSt}, {sT0}, {vL16}"]
        st_rd += [f"ds_read_b128 {sbufs[p][4 * i:4 * i + 4]}, {vSt} offset:{i * 1024}" for i in range(5)]
        if c == 3:
            rd = st_rd + rd
        for t in range(4):
            rd += [f"ds_read_b64_tr_b16 {wf[p][t][0:2]}, {vW1A} offset:{c * 16384 + t * 4096}",
                   f"ds_read_b64_tr_b16 {wf[p][t][2:4]}, {vW1A} offset:{c * 16384 + t * 4096 + 512}"]
            rd += [f"ds_read_b128 {XF[p][(t * 4 + b) * 4:(t * 4 + b) * 4 + 4]}, {vXT[t]} offset:{b * 4096}" for b in range(4)]
            n = c * 4 + t
            mf += [f"{M16} {acch[4 * b:4 * b + 4]}, {wf[p][t]}, {XF[p][(t * 4 + b) * 4:(t * 4 + b) * 4 + 4]}, {acch[4 * b:4 * b + 4] if n else 0}" for b in (3, 2, 1, 0)]
            mf += [f"{M16} {csh}, {wf[p][t]}, {vOnes}, {csh if n else 0}"]
        if c < 3:
            rd += st_rd
        stp = dict(reads=rd, mfma=mf, nowait=True)

        def pre(c=c):
            A.wait(vm=w1d[c][-1])
            A.bg_limit = 1 << 30
            at(f"xa{c}")
            A("s_barrier")
            if c == 2:
                assert clear_pos < w1d[c][-1].tok[1]
                announce()
                A.enqueue(qd[0])
        stp["pre"] = pre
        if c < 2:
            stp["post"] = list(reversed(dots(c)))
        if c == 2:
            stp["post"] = list(reversed(dots(2))) + dots(3)
            stp["end"] = lambda: fill1.extend(fin)
        steps.append(stp)
    EV["q1"] = lambda: A.enqueue(qd[1])
    EV["q2"] = lambda: A.enqueue(qd[2])
    run_steps(steps, opt.get("hk", 1), fill=fill1)
    run(fill1)
    barrier()
    at("hepi0")
    assert all(t.tok for t in tch)
    V.free(vXD, vXS, vXT, vSt, vW1A, sacc, sbufs, vWA1, vWA3)
    S.free(sXreg, sXk, sXW, srd["x"], srd["w1"])
    stamp("hpass")

    xf = [[WP[p][4 * b:4 * b + 4] for b in range(5)] for p in range(2)]
    wf = [[WP[p][20 + 4 * g:24 + 4 * g] for g in range(3)] for p in range(2)]
    accq, acck, accv = V.quads(16, "accq"), V.quads(20, "acck"), V.quads(20, "accv")
    csq, csk, csv = V.alloc(4, "csq"), V.alloc(4, "csk"), V.alloc(4, "csv")

    hmr = V.quads(8, "h mean/rr")
    hp = V.quads(8, "h packed")
    gt = V.quads(16, "gelu tmp")
    for b in range(4):
        A(f"ds_read_b64 {hmr[2 * b:2 * b + 2]}, {vHr} offset:{MH + 16 + 128 * b}")
    arrival_issue()
    vC0 = V.alloc(2, "c0 pair")
    A(f"v_mov_b32 {vC0[0]}, {sC[0]}")
    u = lambda i: acch[2 * i:2 * i + 2]
    mr = lambda i: hmr[2 * (i // 2): 2 * (i // 2) + 2]
    cs = lambda i: csh[2 * (i % 2): 2 * (i % 2) + 2]
    g_ = lambda i: gt[2 * i:2 * i + 2]
    A.wait(lg=A.lg_issued)
    for i in range(8):
        A(f"v_pk_fma_f32 {u(i)}, {cs(i)}, {mr(i)}, {u(i)} op_sel_hi:[1,0,1] neg_lo:[0,1,0] neg_hi:[0,1,0]")
    for i in range(8):
        A(f"v_pk_mul_f32 {u(i)}, {u(i)}, {mr(i)} op_sel:[0,1] op_sel_hi:[1,1]")
    for i in range(8):
        A(f"v_pk_mul_f32 {g_(i)}, {u(i)}, {u(i)}")
    for i in range(8):
        A(f"v_pk_fma_f32 {g_(i)}, {g_(i)}, {sC}, {vC0} op_sel:[0,1,0] op_sel_hi:[1,1,0]")
    for i in range(8):
        A(f"v_pk_mul_f32 {g_(i)}, {g_(i)}, {u(i)}")
    for i in range(16):
        A(f"v_exp_f32 {gt[i]}, {gt[i]}")
    at("hepi1")
    for i in range(8):
        A(f"v_pk_add_f32 {g_(i)}, {g_(i)}, 1.0 op_sel_hi:[1,0]")
    for i in range(16):
        A(f"v_rcp_f32 {gt[i]}, {gt[i]}")
    for i in range(8):
        A(f"v_pk_mul_f32 {g_(i)}, {g_(i)}, {u(i)}")
    for i in range(8):
        A(f"v_cvt_pk_bf16_f32 {hp[i]}, {gt[2 * i]}, {gt[2 * i + 1]}")

    def swap_pairs(pk):
        for p in range(2):
            A(f"v_permlane16_swap_b32 {pk[4 * p]}, {pk[4 * p + 2]}")
            A(f"v_permlane16_swap_b32 {pk[4 * p + 1]}, {pk[4 * p + 3]}")

    def store_pairs(pk, base):
        o = []
        for p in range(2):
            o += [f"s_add_u32 {sT0}, {sHO}, {base + p * 32768}",
                  f"buffer_store_dwordx4 {pk[4 * p:4 * p + 4]}, {vL16}, {srd['ws']}, {sT0} offen sc1"]
        return o
    swap_pairs(hp)
    A.lock()
    announce_cleared()
    run(store_pairs(hp, WS_H))
    hst = A.vmtok()
    A.unlock()
    at("hepi2")
    V.free(hmr, hp, gt, vC0, acch, csh, vHr)
    stamp("hstored")

    W2S = [L[0], L[1], L[2], L[8]]
    W3I = [[5, 3, 4, 6], [7, 1, 2, 8]]
    WOS = [L[7], L[1], L[2], L[8]]
    W4S = [L[0], L[5], L[3], L[4], L[6], L[7], L[1], L[2], L[8]]
    acc = [V.alloc(16, "acc0"), V.alloc(16, "acc1")]
    xfp = V.quads(16, "x fp32")
    xres = acc[1][0:8]
    vMRo = acc[1][8:10]
    vHalf, vM32, vI16, vI7 = va("half", "m32", "i16", "i7")
    sMB, sM3, sSmB, sAsB, sW3b, sX1b, sW4b, sH2b = sa("mb own", "mb p3", "w2/wo base", "h/o base", "w3 base", "x1 base", "w4 base", "h2 base")
    sFoH, sFoX, sFo2, sPoH, sPoX, sPo2, sX1o, sH2o = sa(*"foh fox fo2 poh pox po2 x1o h2o".split())
    sW3c, sWX, sW4c, sH2c = sa("w3 base hi", "wx", "w4 base b", "h2 base b")
    sI7 = sa(*[f"i7_{q}" for q in range(7)])
    sCB = [sa(*[f"cb{p}{c}" for c in range(4)]) for p in range(2)]
    vW3 = va(*[f"w3_{i}" for i in range(4)])
    vBN, vBP, vB3 = va("bn0", "bn1"), va("bp0", "bp1"), va("b30", "b31")
    vPar, = va("par")
    vMs, selS, selP = va("ms0", "ms1"), va("selS0", "selS1"), va("selP0", "selP1")
    vEXw, vEXr = va("exw", "exr")
    tabm = {}
    mark_ = lambda k: (lambda: tabm.update({k: 1}))
    def rot2_setup():
        A(f"s_and_b32 {sR2}, {sRB}, {3 if ROT2 else 0}")
        if ROT2 == 2:
            A(f"s_cmp_eq_u32 {sJ}, 3")
            A(f"s_cselect_b32 {sR2}, {sR2}, 0")
        if ROTA:
            A(f"s_xor_b32 {sR2}, {sR2}, {sJ}")
            A(f"s_and_b32 {sR2}, {sR2}, 3")
        A(f"s_lshl_b32 {sR2}, {sR2}, 12")
    tab = deque()
    tab += [f"s_lshr_b32 {sKH}, {sW}, 1",
            f"s_and_b32 {sMH}, {sW}, 1",
            f"v_lshrrev_b32 {vHalf}, 5, {vL}",
            f"v_and_b32 {vM32}, 31, {vL}",
            f"s_lshr_b32 {sT0}, {sJ}, 1",
            f"s_lshl_b32 {sT0}, {sT0}, 8",
            f"s_xor_b32 {sT0}, {sT0}, {sRQ if ROTQ else 0}",
            f"s_mulk_i32 {sT0}, 80",
            f"s_addk_i32 {sT0}, {XB}",
            f"s_lshl_b32 {sT1}, {sMH}, 5",
            f"s_add_u32 {sT1}, {sT1}, 14",
            f"v_add_u32 {vT0}, {sT1}, {vM32}",
            f"s_lshl1_add_u32 {sT2}, {sJ}, {sKH}",
            f"s_lshl_b32 {sT2}, {sT2}, 2",
            f"v_lshlrev_b32 {vT1}, 1, {vT0}",
            f"v_bitop3_b32 {vT1}, {vT1}, {sT2}, 15 bitop3:0x28",
            f"v_lshl_add_u32 {vT1}, {vT0}, 4, {vT1}",
            f"v_lshl_add_u32 {vT1}, {vT1}, 1, {vHalf}",
            f"v_lshl_add_u32 {vT1}, {vT1}, 3, {sT0}"]
    for q in range(4):
        tab += [f"v_xor_b32 {vT2}, {q * 16}, {vT1}", f"ds_read_b64 {xres[2 * q:2 * q + 2]}, {vT2}"]
    tab += [f"v_lshlrev_b32 {vT0}, 3, {vT0}", f"ds_read_b64 {vMRo}, {vT0} offset:{MR + 16}",
            f"v_add_u32 {vWB[1]}, 7168, {vWB[0]}", f"v_add_u32 {vWB[3]}, {3 * 7168}, {vWB[0]}",
            f"s_mul_i32 {sSmB}, {sKH}, {3 << 16}", rot2_setup, mark_("x"),
            f"s_lshl2_add_u32 {sT0}, {sLI}, {sW}",
            f"s_lshl2_add_u32 {sFoH}, {sT0}, {sFLB}", mark_("h"),
            f"v_lshlrev_b32 {vI16}, 2, {vM16}",
            f"v_min_u32 {vI7}, 24, {vI16}",
            f"s_lshl1_add_u32 {sMB}, {sRB}, {sMH}",
            f"s_lshl2_add_u32 {sM3}, {sCL}, {sW}",
            f"s_min_u32 {sTILE}, {sLI}, 13",
            f"s_and_b32 {sT0}, {sRB}, 1",
            f"s_lshl1_add_u32 {sT0}, {sT0}, {sKH}",
            f"s_lshl_b32 {sT0}, {sT0}, 6",
            f"s_add_u32 {sPoH}, {sT0}, {sFLB}",
            f"s_lshl1_add_u32 {sT1}, {sMB}, {sKH}",
            f"s_lshl_b32 {sAsB}, {sT1}, 14",
            f"s_add_u32 {sAsB}, {sAsB}, {sR2}",
            f"s_mul_i32 {sT1}, {sT1}, {7 << 13}",
            f"s_add_u32 {sH2b}, {sT1}, {WS_H2}", mark_("p"),
            f"s_lshl3_add_u32 {sT0}, {sMB}, {sJ}",
            f"s_lshl1_add_u32 {sX1o}, {sT0}, {sKH}",
            f"s_and_b32 {sT0}, {sX1o}, 63",
            f"s_lshl2_add_u32 {sFoX}, {sT0}, {sFLB}",
            f"s_lshl_b32 {sT0}, {sW}, 6",
            f"s_add_u32 {sPoX}, {sT0}, {sFLB}",
            f"s_lshl2_add_u32 {sFo2}, {sLI}, {sPoX}",
            f"s_and_b32 {sT0}, {sMB}, 3",
            f"s_lshl_b32 {sT0}, {sT0}, 6",
            f"s_mul_i32 {sT1}, {sKH}, 28",
            f"s_add_u32 {sT0}, {sT0}, {sT1}",
            f"s_add_u32 {sPo2}, {sT0}, {sFLB}",
            f"s_mul_i32 {sT0}, {sM3}, 14",
            f"s_add_u32 {sT0}, {sT0}, {sTILE}",
            f"s_lshl_b32 {sT0}, {sT0}, 13",
            f"s_add_u32 {sH2o}, {sT0}, {WS_H2}",
            f"s_and_b32 {sWX}, {sTILE}, {3 if ROTA else 0}",
            f"s_xor_b32 {sWX}, {sWX}, {sW}",
            f"s_lshl2_add_u32 {sT0}, {sM3}, {sWX}",
            f"s_and_b32 {sT1}, {sRB}, {2 if ROT3 else 0}",
            f"s_xor_b32 {sT0}, {sT0}, {sT1}",
            f"s_mul_i32 {sW3c}, {sT1}, {128 * 3584}",
            f"s_lshl_b32 {sT0}, {sT0}, 13",
            f"s_add_u32 {sX1b}, {sT0}, {WS_X1}",
            f"s_mul_i32 {sW4b}, {sKH}, {13 << 16}",
            f"s_lshl_b32 {sT0}, {sTILE}, 8",
            f"s_add_u32 {sW3b}, {sT0}, {sW3c}",
            f"s_sub_u32 {sW3c}, {sT0}, {sW3c}",
            f"s_lshl_b32 {sT0}, {sW}, 5",
            f"v_add_u32 {vT0}, {sT0}, {vR8}",
            f"v_mul_u32_u24 {vT0}, 3584, {vT0}",
            f"v_add_u32 {vW3[0]}, {vT0}, {vSB}"]
    tab += [f"v_add_u32 {vW3[i]}, {i * (8 * 3584 - 1024)}, {vW3[0]}" for i in range(1, 4)]
    if IDLE:
        vI4, vI3 = va("idle w4 share", "idle w3b")

        def idle_only(fn):
            lab = A.newlabel("NIDLE")
            A.lock()
            A(f"s_cmp_lt_u32 {sLI}, 14")
            A(f"s_cbranch_scc1 {lab}")
            A.cond_begin()
            fn()
            A.cond_end()
            A.label(lab)
            A.unlock()
            return A.vmtok()

        def idle_setup():
            for i in range(4):
                A(f"v_mov_b32 {vW3[i]}, {OOB}")
        tab += [lambda: idle_only(idle_setup),
                f"s_lshl1_add_u32 {sT0}, {sCL}, {sLI}",
                f"s_sub_u32 {sT0}, {sT0}, 14",
                f"s_lshl2_add_u32 {sT0}, {sT0}, {sW}",
                f"s_mul_i32 {sT1}, {sT0}, {112 * 128}",
                f"v_min_u32 {vT0}, 55, {vL}",
                f"v_lshl_add_u32 {vI4}, {vT0}, 7, {sT1}",
                f"s_and_b32 {sT0}, {sT0}, 15",
                f"s_lshl_b32 {sT0}, {sT0}, 14",
                f"s_addk_i32 {sT0}, 128",
                f"v_lshl_add_u32 {vI3}, {vL}, 8, {sT0}"]

        def i4():
            A(f"buffer_load_dword {vPF}, {vI4}, {srd['w4']}, 0 offen", nodef=True, count=False)
            A(f"s_movk_i32 {sSO}, {56 * 128}")
            A(f"buffer_load_dword {vPF}, {vI4}, {srd['w4']}, {sSO} offen", nodef=True, count=False)
        i4d = group([lambda: idle_only(i4)], 18.5)

        def i3(k, so, count):
            A(f"s_mov_b32 {so}, {k << 18}")
            A(f"buffer_load_dword {vPF}, {vI3}, {srd['w3']}, {so} offen", nodef=True, count=count)
        I3EARLY = opt.get("i3early", 0)
        i3d = [group([lambda k=k: idle_only(lambda: i3(k, sSO, False))], 20.5) for k in range(I3EARLY)]
    tab += [mark_("w3"),
            f"v_lshl_add_u32 {vB3[0]}, {vHalf}, 9, {vTB}",
            f"v_xor_b32 {vB3[1]}, 64, {vB3[0]}",
            f"s_mul_i32 {sT0}, {sKH}, {8192 + 64}",
            f"v_xor_b32 {vBP[0]}, {sT0}, {vB3[0]}",
            f"v_xor_b32 {vBP[1]}, 64, {vBP[0]}",
            f"v_lshl_add_u32 {vT0}, {vHalf}, 10, {vTB}",
            f"v_xor_b32 {vBN[0]}, {sT0}, {vT0}",
            f"v_xor_b32 {vBN[1]}, 64, {vBN[0]}",
            f"v_add_u32 {vEXw}, {sM0W}, {vL16}",
            f"v_xor_b32 {vEXr}, 8192, {vEXw}"]
    for p in range(2):
        lit = sum(W3I[p][c] << (4 * c) for c in range(4))
        for c in range(4):
            tab += [f"s_xor_b32 {sT0}, {sWX}, {c}",
                    f"s_lshl2_add_u32 {sT0}, {sT0}, 0x40000",
                    f"s_bfe_u32 {sT0}, 0x{lit:x}, {sT0}",
                    f"s_lshl_b32 {sCB[p][c]}, {sT0}, 14"]
    lit7 = sum((v % 7) << (4 * v) for v in range(16))

    def rot4_setup():
        A(f"s_and_b32 {sT0}, {sRB}, {3 if ROT4 else 0}")
        if ROT4 == 2:
            A(f"s_cmp_eq_u32 {sJ}, 3")
            A(f"s_cselect_b32 {sT0}, {sT0}, 0")
        A(f"s_lshl1_add_u32 {sT0}, {sT0}, {sJ if ROTA else 0}")
        A(f"s_cmp_ge_u32 {sT0}, 7")
        A(f"s_cselect_b32 {sT1}, 7, 0")
        A(f"s_sub_u32 {sT0}, {sT0}, {sT1}")
    tab += [rot4_setup, f"s_mov_b32 {s64[0]}, 0x{lit7 & 0xffffffff:x}", f"s_mov_b32 {s64[1]}, 0x{lit7 >> 32:x}",
            f"s_lshl_b32 {sT0}, {sT0}, 2", f"s_lshr_b64 {s64}, {s64}, {sT0}"]
    for q in range(7):
        tab += [f"s_bfe_u32 {sT0}, {s64[0]}, 0x{(4 << 16) | (4 * q):x}", f"s_lshl_b32 {sI7[q]}, {sT0}, 13"]
    tab += [f"s_add_u32 {sW4c}, {sW4b}, 65536", f"s_add_u32 {sH2c}, {sH2b}, 4096"]
    tab += [f"v_mul_f32 {vMRo[0]}, {vMRo[0]}, {vMRo[1]}"]
    for i in range(8):
        tab += [f"v_lshlrev_b32 {xfp[2 * i]}, 16, {xres[i]}", f"v_and_b32 {xfp[2 * i + 1]}, 0xffff0000, {xres[i]}"]
    tab += [f"v_fma_f32 {acc[0][i]}, {xfp[i]}, {vMRo[1]}, -{vMRo[0]}" for i in range(16)]
    tab += [f"v_and_b32 {vT2}, 1, {vL}",
            f"v_sub_u32 {vPar}, 0, {vT2}",
            f"v_lshl_add_u32 {vT2}, {vG}, 2, {vT2}",
            f"v_sub_u32 {vT2}, {vT2}, {vM16}"]
    for e in range(2):
        lo, hi = (0x0c0c0100, 0x01000c0c) if e == 0 else (0x0c0c0302, 0x03020c0c)
        tab += [f"v_add_u32 {vMs[e]}, {2 * e - 1}, {vT2}",
                f"v_ashrrev_i32 {vMs[e]}, 31, {vMs[e]}",
                f"v_mov_b32 {vT0}, 0x{hi:x}",
                f"v_mov_b32 {vT1}, 0x{lo:x}",
                f"v_bfi_b32 {vT0}, {vPar}, {vT0}, {vT1}",
                f"v_mov_b32 {vT1}, 0x0c0c0c0c",
                f"v_bfi_b32 {selS[e]}, {vMs[e]}, {vT0}, {vT1}",
                f"v_bfi_b32 {selP[e]}, {vMs[e]}, {vT1}, {vT0}"]

    def so_small(q):
        def f():
            if ROT2 or ROTA:
                A(f"s_xor_b32 {sSO}, {sR2}, {q << 12}")
                A(f"s_lshl4_add_u32 {sSO}, {sSO}, {sSmB}")
            else:
                A(f"s_add_u32 {sSO}, {sSmB}, {q << 16}")
        return f
    w2d = [dma_chunk("w2", vWB, so_small(q), W2S[q], 17.5) for q in range(4)]
    wod = [dma_chunk("wo", vWB, so_small(q), WOS[q], 21) for q in range(4)]
    w3d = [[dma_chunk("w3", vW3, (lambda p=p, c=c: A(f"s_add_u32 {sSO}, {sW3c if c >= 2 else sW3b}, {c * 128 * 3584 + p * 128}")), L[W3I[p][c]], 20 + 3 * p)
            for c in range(4)] for p in range(2)]
    w4d = [dma_chunk("w4", vWB, (lambda q=q: A(f"s_lshl4_add_u32 {sSO}, {sI7[q % 7]}, {sW4c if q >= 7 else sW4b}")), W4S[q % 9], 31 + q) for q in range(14)]
    hl = [act_loads(actB[16 * q:16 * q + 16], (lambda q=q: A(f"s_xor_b32 {sAO}, {sAsB}, {WS_H + q * 4096}")), 18, "h") for q in range(4)]
    ol = [act_loads(actB[16 * q:16 * q + 16], (lambda q=q: A(f"s_xor_b32 {sAO}, {sAsB}, {WS_O + q * 4096}")), 30 + q, "o") for q in range(4)]
    x1l = [act_loads(actB[16 * i:16 * i + 16], (lambda i=i: A(f"s_xor_b32 {sAO}, {sX1b}, {i << 12}")), 22, "x1") for i in range(8)]
    h2buf = lambda q: actB[16 * ((q + 4) % 8):16 * ((q + 4) % 8) + 16]
    h2l = [act_loads(h2buf(q), (lambda q=q: A(f"s_add_u32 {sAO}, {sI7[q % 7]}, {sH2c if q >= 7 else sH2b}")), 34 + q, "h2") for q in range(14)]
    hpoll = Poll(sPoH, FL_H, vI16, vF[0])

    def need(k):
        while k not in tabm:
            do(tab.popleft())

    def ev_hpub():
        need("h")
        arrival_check()
        A.wait(vm=hst)
        flag_set(sFoH, FL_H)

    def ev_hchk():
        hpoll.check()
        A.enqueue(sum(hl, []))
        if IDLE:
            A.enqueue(i4d)
    EV.update(hpub=ev_hpub, hiss=hpoll.issue, hchk=ev_hchk)

    vRA = va("ra0", "ra1")

    def w_reads(addr, base, second, dst, extra=0):
        rd = [f"v_add_u32 {vRA[nb]}, {base}, {addr[nb]}" for nb in range(2)]
        for T in range(4):
            for nb in range(2):
                f = dst[(T * 2 + nb) * 4:(T * 2 + nb) * 4 + 4]
                rd += [f"ds_read_b64_tr_b16 {f[0:2]}, {vRA[nb]} offset:{extra + T * 2048}",
                       f"ds_read_b64_tr_b16 {f[2:4]}, {vRA[nb]} offset:{extra + T * 2048 + second}"]
        return rd

    def stage_mfma(wb, accs, act, zero=(False, False), acc1_first=False):
        order = [(T, nb) for T in range(4) for nb in range(2)]
        if acc1_first:
            order = [(T, nb) for nb in (1, 0) for T in range(4)]
        return [f"{M32} {accs[nb]}, {wb[(T * 2 + nb) * 4:(T * 2 + nb) * 4 + 4]}, {act[4 * T:4 * T + 4]}, {0 if (T == 0 and zero[nb]) else accs[nb]}"
                for T, nb in order]

    def ex_writes(slot):
        return [f"v_add_u32 {vT0}, {slot}, {vEXw}", f"v_add_u32 {vT1}, {slot}, {vEXr}"], \
               [f"ds_write_b128 {vT0}, {acc[1][4 * q:4 * q + 4]} offset:{q * 1024}" for q in range(4)]

    def with_ex(mf, slot):
        ad, wr = ex_writes(slot)
        return mf[:4] + [lambda: run(ad)] + mf[4:7] + [lambda: run(wr[:2])] + mf[7:] + [lambda: run(wr[2:])]

    def ex_finish():
        barrier()
        for q in range(4):
            A(f"ds_read_b128 {acc[1][4 * q:4 * q + 4]}, {vT1} offset:{q * 1024}")
        for i in range(8):
            A(f"v_pk_add_f32 {acc[0][2 * i:2 * i + 2]}, {acc[0][2 * i:2 * i + 2]}, {acc[1][2 * i:2 * i + 2]}")

    p2steps = []
    for q in range(4):
        wb = WP[(q + 2) % 4]
        mf = stage_mfma(wb, acc, actB[16 * q:16 * q + 16], zero=(False, q == 0), acc1_first=(q == 3))
        if q == 3:
            mf = with_ex(mf, L[0])
        stp = dict(reads=w_reads(vBN, W2S[q], 512, wb), mfma=mf)

        def start(q=q):
            if q == 3:
                barrier()
                A.enqueue(wod[1] + wod[2] + wod[3])
                if IDLE:
                    A.enqueue(sum(i3d, []), dl=21.5)
            A.wait(vm=hl[q][-1])
        stp["start"] = start
        p2steps.append(stp)

    steps = []

    def freed(s):
        if s + 3 < 8:
            A.enqueue(qd[s + 3])
        if s == 1:
            A.enqueue(w2d[0])
        if s == 3:
            A.enqueue(w2d[1])
        if s == 5:
            A.enqueue(w2d[2] + w2d[3])
        if s == 6:
            A.enqueue(w3d[0][0])
        if s == 7:
            A.enqueue(w3d[0][1] + w3d[0][2] + w3d[0][3] + wod[0])
    for n in range(16):
        s, u_ = divmod(n, 2)
        c, t = divmod(n, 4)
        p = n % 2
        xo = (c % 2) * XR
        wo_ = QS * (s % 3) + u_ * 12288
        rd = []
        if n == 8:
            rd += [f"v_add_u32 {r_}, {2 * XR}, {r_}" for r_ in vXA + vXH]
        for g3 in range(3):
            rd += [f"ds_read_b64_tr_b16 {wf[p][g3][0:2]}, {vWQA} offset:{wo_ + g3 * 1024}",
                   f"ds_read_b64_tr_b16 {wf[p][g3][2:4]}, {vWQA} offset:{wo_ + g3 * 1024 + 512}"]
        rd += [f"ds_read_b128 {xf[p][0]}, {vXH[t]} offset:{xo}"]
        rd += [f"ds_read_b128 {xf[p][b + 1]}, {vXA[t]} offset:{xo + b * 4096}" for b in range(4)]
        z = lambda r_: r_ if n else 0
        mf = [f"{M16} {csq}, {wf[p][0]}, {vOnes}, {z(csq)}",
              f"{M16} {csk}, {wf[p][1]}, {vOnes}, {z(csk)}",
              f"{M16} {csv}, {vOnes}, {wf[p][2]}, {z(csv)}"]
        for kb in range(5):
            mf.append(f"{M16} {acck[4 * kb:4 * kb + 4]}, {wf[p][1]}, {xf[p][kb]}, {z(acck[4 * kb:4 * kb + 4])}")
            mf.append(f"{M16} {accv[4 * kb:4 * kb + 4]}, {xf[p][kb]}, {wf[p][2]}, {z(accv[4 * kb:4 * kb + 4])}")
            if kb:
                b = kb - 1
                mf.append(f"{M16} {accq[4 * b:4 * b + 4]}, {wf[p][0]}, {xf[p][kb]}, {z(accq[4 * b:4 * b + 4])}")
        stp = dict(reads=rd, mfma=mf)
        if u_ == 0:
            def pre(s=s):
                barrier(vm=qd[s][-1])
                if s:
                    freed(s - 1)
            stp["pre"] = pre

        def end(n=n):
            if n == 2:
                need("x")
            if n == 9:
                need("p")
            if n == 11:
                need("w3")
            if n == 14:
                run(tab)
                tab.clear()
            at(f"qkv{n}")
        stp["end"] = end
        steps.append(stp)

    def p2pre():
        barrier(vm=w2d[3][-1])
        freed(7)
    p2steps[0]["pre"] = p2pre
    steps[15]["k"] = 1.25
    run_steps(steps, 1, fill=tab, tail=p2steps[0])
    V.free(vXA, vXH, vWQA, vWQ, vSB, vR8, vTB)
    S.free(sQM, srd["qkv"])
    stamp("qkv")

    run_steps(p2steps, 3, primed=1)
    stamp("p2mm")
    A.lock()
    ex_finish()
    pk8 = V.quads(8, "pk8")
    for i in range(8):
        A(f"v_cvt_pk_bf16_f32 {pk8[i]}, {acc[0][2 * i]}, {acc[0][2 * i + 1]}")
    A(f"s_lshl_b32 {sT0}, {sX1o}, 11")
    A(f"s_add_u32 {sT0}, {sT0}, {WS_X1}")
    for c in range(2):
        A(f"buffer_store_dwordx4 {pk8[4 * c:4 * c + 4]}, {vL16}, {srd['ws']}, {sT0} offen offset:{c * 1024} sc1")
    sq = acc[1]
    A(f"v_pk_add_f32 {sq[0:2]}, {acc[0][0:2]}, {acc[0][2:4]}")
    A(f"v_pk_mul_f32 {sq[2:4]}, {acc[0][0:2]}, {acc[0][0:2]}")
    A(f"v_pk_fma_f32 {sq[2:4]}, {acc[0][2:4]}, {acc[0][2:4]}, {sq[2:4]}")
    for i in range(2, 8):
        A(f"v_pk_add_f32 {sq[0:2]}, {sq[0:2]}, {acc[0][2 * i:2 * i + 2]}")
        A(f"v_pk_fma_f32 {sq[2:4]}, {acc[0][2 * i:2 * i + 2]}, {acc[0][2 * i:2 * i + 2]}, {sq[2:4]}")
    A(f"v_add_f32 {sq[0]}, {sq[0]}, {sq[1]}")
    A(f"v_add_f32 {sq[2]}, {sq[2]}, {sq[3]}")
    A(f"v_lshlrev_b32 {vT0}, 2, {vL}")
    A(f"s_lshl_b32 {sT0}, {sX1o}, 8")
    A(f"s_add_u32 {sT0}, {sT0}, {WS_ST}")
    A(f"v_permlane32_swap_b32 {sq[0]}, {sq[2]}")
    A(f"v_add_f32 {sq[0]}, {sq[0]}, {sq[2]}")
    x1st = A(f"buffer_store_dword {sq[0]}, {vT0}, {srd['ws']}, {sT0} offen sc1")
    A.unlock()
    kmr = V.quads(12, "k mean/rstd")
    vmean = V.quads(20, "v mean")
    vrstd = V.quads(20, "v rstd")
    A(f"v_lshlrev_b32 {vT0}, 3, {vM16}")
    A(f"v_lshlrev_b32 {vT1}, 4, {vG}")
    for kb in range(5):
        A(f"ds_read_b128 {vmean[4 * kb:4 * kb + 4]}, {vT1} offset:{MEAN + 64 * kb}")
        A(f"ds_read_b128 {vrstd[4 * kb:4 * kb + 4]}, {vT1} offset:{RSTD + 64 * kb}")
    for kb in range(5):
        A(f"ds_read_b64 {kmr[2 * kb:2 * kb + 2]}, {vT0} offset:{MR + 128 * kb}")
    for i in range(8):
        A(f"v_pk_add_f32 {acc[0][2 * i:2 * i + 2]}, {acc[0][2 * i:2 * i + 2]}, {xfp[2 * i:2 * i + 2]}")
    V.free(xfp)
    stamp("x1stored")

    def pub_x1():
        A.wait(vm=x1st)
        flag_set(sFoX, FL_X1)
    x1poll = Poll(sPoX, FL_X1, vI16, vF[0])
    EV.update(x1pub=pub_x1, x1iss=x1poll.issue)

    A.wait(lg=A.lg_issued)

    def fold_rows(accr, cs, mr, dst):
        for e in range(2):
            u = accr[2 * e:2 * e + 2]
            A(f"v_pk_fma_f32 {u}, {cs[2 * e:2 * e + 2]}, {mr}, {u} op_sel_hi:[1,0,1] neg_lo:[0,1,0] neg_hi:[0,1,0]")
        for e in range(2):
            u = accr[2 * e:2 * e + 2]
            A(f"v_pk_mul_f32 {u}, {u}, {mr} op_sel:[0,1] op_sel_hi:[1,1]")
        for e in range(2):
            A(f"v_cvt_pk_bf16_f32 {dst[e]}, {accr[2 * e]}, {accr[2 * e + 1]}")
    for kb in range(5):
        for e in range(2):
            u = accv[4 * kb + 2 * e:4 * kb + 2 * e + 2]
            A(f"v_pk_fma_f32 {u}, {vmean[4 * kb + 2 * e:4 * kb + 2 * e + 2]}, {csv[0:2]}, {u} neg_lo:[1,0,0] neg_hi:[1,0,0]")
        for e in range(2):
            u = accv[4 * kb + 2 * e:4 * kb + 2 * e + 2]
            A(f"v_pk_mul_f32 {u}, {u}, {vrstd[4 * kb + 2 * e:4 * kb + 2 * e + 2]}")
    V.free(vmean, vrstd)
    Qp, Kp, Vp = V.quads(8, "Qp"), V.quads(12, "Kp"), V.quads(12, "Vp")
    for kb in range(5):
        fold_rows(acck[4 * kb:4 * kb + 4], csk, kmr[2 * kb:2 * kb + 2], Kp[2 * kb:2 * kb + 2])
    for b in range(4):
        fold_rows(accq[4 * b:4 * b + 4], csq, kmr[2 * b + 2:2 * b + 4], Qp[2 * b:2 * b + 2])
    at("attn0")
    Ss, Sp = accq, acck
    Pz = V.quads(8, "pk,0 pairs")
    cv = [f"v_cvt_pk_bf16_f32 {Vp[i]}, {accv[2 * i]}, {accv[2 * i + 1]}" for i in range(10)]
    cv += [lambda: run([f"s_cmp_eq_u32 {sRB}, 0", f"s_cselect_b32 {sT0}, -1, 0"]), f"v_mov_b32 {vT1}, {f2u(-4e9)}"]
    cv += [f"v_mov_b32 {Pz[2 * b + 1]}, 0" for b in range(4)]
    mf = []
    for b in range(4):
        mf.append(f"{MA} {Ss[4 * b:4 * b + 4]}, {Kp[2 * b + 2:2 * b + 4]}, {Qp[2 * b:2 * b + 2]}, 0")
        mf.append(f"{MA} {Sp[4 * b:4 * b + 4]}, {Kp[2 * b:2 * b + 2]}, {Qp[2 * b:2 * b + 2]}, 0")
    run(weave(mf, cv, 2))
    V.free(kmr, csq, csk, csv)
    lg = V.quads(8, "logits")
    mx = V.alloc(4, "mx")
    mt = V.alloc(4, "mt")
    for b in range(4):
        for e in range(2):
            A(f"v_bfi_b32 {Ss[4 * b + 2 * e]}, {vPar}, {Ss[4 * b + 2 * e + 1]}, {Ss[4 * b + 2 * e]}")
            A(f"v_bfi_b32 {Sp[4 * b + 2 * e]}, {vPar}, {Sp[4 * b + 2 * e + 1]}, {Sp[4 * b + 2 * e]}")
            if b == 0:
                A(f"v_bfi_b32 {Sp[2 * e]}, {sT0}, {vT1}, {Sp[2 * e]}")
            A(f"v_bfi_b32 {lg[2 * b + e]}, {vMs[e]}, {Ss[4 * b + 2 * e]}, {Sp[4 * b + 2 * e]}")
    for b in range(4):
        A(f"v_max_f32 {mx[b]}, {lg[2 * b]}, {lg[2 * b + 1]}")
    for sw in ("v_permlane16_swap_b32", "v_permlane32_swap_b32"):
        for b in range(2):
            A(f"v_mov_b64 {mt[2 * b:2 * b + 2]}, {mx[2 * b:2 * b + 2]}")
        for b in range(4):
            A(f"{sw} {mx[b]}, {mt[b]}")
        for b in range(4):
            A(f"v_max_f32 {mx[b]}, {mx[b]}, {mt[b]}")
    at("attn1")
    A(f"s_mov_b32 {s64[0]}, {f2u(0.25 * LOG2E)}")
    for b in range(4):
        sel = b % 2
        A(f"v_pk_add_f32 {lg[2 * b:2 * b + 2]}, {lg[2 * b:2 * b + 2]}, {mx[2 * (b // 2):2 * (b // 2) + 2]} op_sel:[0,{sel}] op_sel_hi:[1,{sel}] neg_lo:[0,1] neg_hi:[0,1]")
    for b in range(4):
        A(f"v_pk_mul_f32 {lg[2 * b:2 * b + 2]}, {lg[2 * b:2 * b + 2]}, {s64} op_sel_hi:[1,0]")
    for i in range(8):
        A(f"v_exp_f32 {lg[i]}, {lg[i]}")
    Ps, Pp = V.quads(8, "Psame"), V.quads(8, "Pprev")
    for b in range(4):
        A(f"v_cvt_pk_bf16_f32 {Pz[2 * b]}, {lg[2 * b]}, {lg[2 * b + 1]}")
    Osum, Oacc = acck, accq
    pm = []
    for PP, sel in ((Ps, selS), (Pp, selP)):
        for b in range(4):
            for e in range(2):
                pm.append(f"v_perm_b32 {PP[2 * b + e]}, {Pz[2 * b]}, {Pz[2 * b]}, {sel[e]}")
    mf = [f"{MA} {Osum[4 * b:4 * b + 4]}, {vOnes[0:2]}, {Pz[2 * b:2 * b + 2]}, 0" for b in range(4)]
    mf += [f"{MA} {Oacc[4 * b:4 * b + 4]}, {Vp[2 * b + 2:2 * b + 4]}, {Ps[2 * b:2 * b + 2]}, 0" for b in range(4)]
    run(weave(mf, pm, 2))
    mf = [f"{MA} {Oacc[4 * b:4 * b + 4]}, {Vp[2 * b:2 * b + 2]}, {Pp[2 * b:2 * b + 2]}, {Oacc[4 * b:4 * b + 4]}" for b in range(4)]
    run(weave(mf, [f"v_rcp_f32 {Osum[4 * b]}, {Osum[4 * b]}" for b in range(4)], 1))
    at("attn2")
    for b in range(4):
        for e in range(2):
            u = Oacc[4 * b + 2 * e:4 * b + 2 * e + 2]
            A(f"v_pk_mul_f32 {u}, {u}, {Osum[4 * b:4 * b + 2]} op_sel_hi:[1,0]")
    for b in range(4):
        for e in range(2):
            A(f"v_cvt_pk_bf16_f32 {pk8[2 * b + e]}, {Oacc[4 * b + 2 * e]}, {Oacc[4 * b + 2 * e + 1]}")
    swap_pairs(pk8)
    otok = {}

    def ev_ost():
        A.lock()
        run(store_pairs(pk8, WS_O))
        otok["t"] = A.vmtok()
        A.unlock()

    def ev_opub():
        A.wait(vm=otok["t"])
        flag_set(sFoH, FL_O)
    EV.update(ost=ev_ost, opub=ev_opub)
    at("attn3")
    V.free(accq, acck, accv, Qp, Kp, Vp, vPar, vMs, selS, selP, lg, mx, mt, Pz, Ps, Pp)
    stamp("attn")

    stv = V.quads(16, "stat partials")

    def so_st():
        A(f"s_lshl_b32 {sAO}, {sM3}, 12")
        A(f"s_add_u32 {sAO}, {sAO}, {WS_ST}")
    stl = act_loads(stv, so_st, 22)
    l_idle, l_join = "L_IDLE", "L_JOIN"

    def ev_x1chk():
        if IDLE:
            A.bg_flush()
            idle_state["wp"] = wp_done[0]
            idle_state["fired"] = set(fired)
            assert not A.bgq and "x1pub" in fired
            A.lock()
            A(f"s_cmp_ge_u32 {sLI}, 14")
            A(f"s_cbranch_scc1 {l_idle}")
            A.unlock()
        x1poll.check()
        stamp("x1polled")
        A.enqueue(sum(x1l[:4], []) + stl + sum(x1l[4:], []))
    EV["x1chk"] = ev_x1chk
    idle_state = {}
    wp_done = [0]
    barrier(vm=wod[3][-1])
    stamp("wolanded")
    for q in range(4):
        at(f"pre3_{q}")
        run(w_reads(vBN, WOS[q], 512, WP[q]))
        wp_done[0] = q + 1
    at("pre3_4")

    acc3 = [V.alloc(16, f"acc3{nb}") for nb in range(2)]
    vK = V.alloc(4, "mean,k0,k1,ir")
    csb = V.quads(16, "cs buf")
    csa = V.quads(8, "cs acc")
    g3t = acc[1]
    wfr = [V.quads(32, "wfr0"), V.quads(32, "wfr1")]
    vH2o, vCSa, vCSw, vCSl = va("h2 voff", "cs addr", "cs wr", "cs lane")
    vSel = vOnes
    if IDLE:
        vH2v = vL16
    else:
        vH2v = vH2o
        A(f"s_cmp_lt_u32 {sLI}, 14")
        A(f"s_cselect_b32 {sT0}, 0, {OOB}")
        A(f"v_add_u32 {vH2o}, {sT0}, {vL16}")
    A(f"v_xor_b32 {vT0}, {vL}, {vG}")
    A(f"v_and_b32 {vT0}, 1, {vT0}")
    A(f"v_subrev_u32 {vT0}, 1, {vT0}")
    for i in range(4):
        A(f"v_and_b32 {vSel[i]}, {vT0}, {vOnes[i]}")
    csacc = [csa[0:4], csa[4:8]]
    fill3 = deque([f"s_lshl_b32 {sT0}, {sW}, 8",
                   f"s_addk_i32 {sT0}, {CS3}",
                   f"v_add_u32 {vCSw}, {sT0}, {vI16}",
                   f"v_lshlrev_b32 {vCSl}, 2, {vL}",
                   f"v_lshlrev_b32 {vCSa}, 4, {vHalf}"])

    def x1_stats():
        o = [lambda: A.wait(vm=stl[-1])]
        for i in range(1, 4):
            for e in range(4):
                o.append(f"v_add_f32 {stv[e]}, {stv[e]}, {stv[4 * i + e]}")
        o += [f"s_lshl_b32 {sT1}, {sW}, 10",
              f"s_addk_i32 {sT1}, {STX}",
              f"v_add_u32 {vT0}, {sT1}, {vL16}",
              f"ds_write_b128 {vT0}, {stv[0:4]}",
              f"v_lshl_add_u32 {vT1}, {vM32}, 2, {sT1}"]
        for g in range(4):
            o.append(f"ds_read2_b32 {stv[4 + 2 * g:6 + 2 * g]}, {vT1} offset0:{g * 64} offset1:{g * 64 + 32}")
        o += [None] * 6
        for e in range(2):
            o += [f"v_add_f32 {stv[2 + e]}, {stv[8 + e]}, {stv[10 + e]}", f"v_add_f32 {stv[e]}, {stv[4 + e]}, {stv[6 + e]}"]
        o += [f"v_add_f32 {stv[0]}, {stv[0]}, {stv[2]}",
              f"v_add_f32 {stv[1]}, {stv[1]}, {stv[3]}",
              f"v_mul_f32 {vK[0]}, {f2u(1 / 512)}, {stv[0]}",
              f"v_mul_f32 {stv[1]}, {f2u(1 / 512)}, {stv[1]}",
              f"v_fma_f32 {stv[1]}, -{vK[0]}, {vK[0]}, {stv[1]}",
              f"v_max_f32 {stv[1]}, 0, {stv[1]}",
              f"v_add_f32 {stv[1]}, {f2u(EPS)}, {stv[1]}",
              f"v_rsq_f32 {stv[2]}, {stv[1]}",
              f"v_mul_f32 {vK[1]}, {sC[0]}, {stv[2]}",
              f"v_mul_f32 {stv[3]}, {stv[2]}, {stv[2]}",
              f"v_mul_f32 {stv[3]}, {stv[3]}, {stv[2]}",
              f"v_mul_f32 {vK[2]}, {sC[1]}, {stv[3]}",
              f"v_mul_f32 {vK[3]}, {stv[1]}, {stv[2]}"]
        return o

    def cs_reads(nb):
        return [f"ds_read_b128 {csb[4 * q:4 * q + 4]}, {vCSa} offset:{CSP + nb * 128 + q * 32}" for q in range(4)]

    def cs_sum():
        return [f"ds_read2st64_b32 {csb[0:2]}, {vCSl} offset0:{CS3 // 256} offset1:{CS3 // 256 + 1}",
                f"ds_read2st64_b32 {csb[2:4]}, {vCSl} offset0:{CS3 // 256 + 2} offset1:{CS3 // 256 + 3}",
                None, None, None,
                f"v_add_f32 {csb[2]}, {csb[2]}, {csb[3]}",
                f"v_add_f32 {csb[0]}, {csb[0]}, {csb[1]}",
                f"v_add_f32 {vT2}, {csb[0]}, {csb[2]}",
                f"ds_write_b32 {vCSl}, {vT2} offset:{CSP}"] + cs_reads(0)

    def gelu3(p, prime=None):
        at(f"g{p}_0")
        for nb in range(2):
            d = acc3[nb]
            u = lambda i: d[2 * i:2 * i + 2]
            g_ = lambda i: g3t[2 * i:2 * i + 2]
            A.wait(lg=A.lg_issued)
            for i in range(8):
                A(f"v_pk_fma_f32 {u(i)}, {csb[2 * i:2 * i + 2]}, {vK[0:2]}, {u(i)} op_sel_hi:[1,0,1] neg_lo:[0,1,0] neg_hi:[0,1,0]")
            if nb == 0:
                run(cs_reads(1))
            for i in range(8):
                A(f"v_pk_mul_f32 {g_(i)}, {u(i)}, {u(i)}")
            for i in range(8):
                A(f"v_pk_fma_f32 {g_(i)}, {g_(i)}, {vK[2:4]}, {vK[0:2]} op_sel:[0,0,1] op_sel_hi:[1,0,1]")
            for i in range(8):
                A(f"v_pk_mul_f32 {g_(i)}, {g_(i)}, {u(i)}")
            for i in range(16):
                A(f"v_exp_f32 {g3t[i]}, {g3t[i]}")
            for i in range(8):
                A(f"v_pk_fma_f32 {g_(i)}, {g_(i)}, {vK[2:4]}, {vK[2:4]} op_sel:[0,1,1] op_sel_hi:[1,1,1]")
            if nb == 1 and prime:
                prime["pre"]()
                run(prime["reads"])
                prime["tok"] = A.lgtok()
            for i in range(16):
                A(f"v_rcp_f32 {g3t[i]}, {g3t[i]}")
            for i in range(8):
                A(f"v_pk_mul_f32 {g_(i)}, {g_(i)}, {u(i)}")
            for i in range(8):
                A(f"v_cvt_pk_bf16_f32 {d[i]}, {g3t[2 * i]}, {g3t[2 * i + 1]}")
            at(f"g{p}_{2 * nb + 1}")
            if p == 1 and nb == 0:
                A(f"s_addk_i32 {sH2o}, 4096")
            A.lock()
            for c in range(2):
                if "h2st" in opt.get("drop", []):
                    h2tok[p] = A.vmtok()
                    continue
                h2tok[p] = A(f"buffer_store_dwordx4 {d[4 * c:4 * c + 4]}, {vH2v}, {srd['ws']}, {sH2o} offen offset:{(nb * 2 + c) * 1024} {opt.get('h2mode', 'sc1')}")
            A.unlock()
            at(f"g{p}_{2 * nb + 2}")

    opoll = Poll(sPoH, FL_O, vI16, vF[0])
    h2poll = [Poll(sPo2, FL_H2 + p * 256, vI7, vF[1]) for p in range(2)]
    h2tok = [None, None]
    h2q = dict(next=0, free=0, ok=0)

    def h2_pump():
        while h2q["next"] < min(h2q["free"], h2q["ok"]):
            A.enqueue(h2l[h2q["next"]])
            h2q["next"] += 1

    def ev_ochk():
        opoll.check()
        A.enqueue(sum(ol, []))

    def ev_h2pub(p):
        A.wait(vm=h2tok[p])
        flag_set(sFo2, FL_H2 + p * 256)

    def ev_h2chk(p):
        h2poll[p].check()
        h2q["ok"] = 7 * (p + 1)
        h2_pump()
    EV.update(oiss=opoll.issue, ochk=ev_ochk, h2apub=lambda: ev_h2pub(0), h2bpub=lambda: ev_h2pub(1),
              h2aiss=h2poll[0].issue, h2biss=h2poll[1].issue, h2achk=lambda: ev_h2chk(0), h2bchk=lambda: ev_h2chk(1))
    p3steps = [[], []]
    for p in range(2):
        for i in range(8):
            wb = wfr[i % 2]
            mf = stage_mfma(wb, acc3, actB[16 * i:16 * i + 16], zero=(i == 0, i == 0))
            if p == 0:
                mf = [lambda i=i: A.wait(vm=x1l[i][-1])] + mf
            if i < 2:
                mf = [f"{M16} {csacc[k % 2]}, {vSel}, {wb[4 * k:4 * k + 4]}, {0 if (i == 0 and k < 2) else csacc[k % 2]}" for k in range(8)] + mf
            stp = dict(reads=w_reads(vB3, sCB[p][i // 2], 1024, wb, extra=8192 + (i % 2) * 8192), mfma=mf)
            if i < 2:
                stp["k"] = 1.5
            if i == 0:
                def pre(p=p):
                    barrier(vm=w3d[p][3][-1])
                    if p == 0:
                        A.enqueue(sum(w3d[1], []) + w4d[0])
                stp["pre"] = pre

            def start(p=p, i=i):
                if p == 0 and i == 4:
                    fill3.extend(x1_stats())
                if i == 7:
                    barrier()
                    A.enqueue(sum(w4d[1 + 4 * p:5 + 4 * p], []))
                    fill3.extendleft(reversed(cs_sum()))

            def end(p=p, i=i):
                if i == 2:
                    run(fill3)
                    fill3.clear()
                    for nb in range(2):
                        A(f"ds_write2_b32 {vCSw}, {csacc[nb][0]}, {csacc[nb][1]} offset0:{nb * 32} offset1:{nb * 32 + 16}")
                if p == 1 and i >= 4:
                    h2q["free"] = i - 3
                    h2_pump()
                at(f"p3{'ab'[p]}{i}")
            stp["start"], stp["end"] = start, end
            p3steps[p].append(stp)
    for p in range(2):
        run_steps(p3steps[p], 3, fill=fill3, primed=p)
        run(fill3)
        fill3.clear()
        stamp(f"p3mm{p}")
        gelu3(p, p3steps[1][0] if p == 0 else None)
        stamp(f"gelu{p}")
    V.free(acc3, stv, vK, csb, csa, vH2o, vW3, vB3, wfr, vCSa, vCSw, vCSl)

    if IDLE:
        A.bg_close_group()
        A.label(l_join)
        main_ins, main_state = A.ins, (A.vm_issued, A.vm_done, A.lg_issued, A.lg_done, dict(A.pend), A.t, A.mfma_free, A.bg_next)
        A.ins = []
        A.lock()
        A.label(l_idle)
        between = fired - idle_state["fired"]
        assert {"ochk", "h2achk", "oiss", "h2aiss"} <= between and not ({"h2biss"} & between)
        A.vm_done, A.lg_done = A.vm_issued, A.lg_issued
        if opt.get("i3", 1):
            for k in range(I3EARLY, 7):
                i3(k, sT0, True)
        for q in range(idle_state["wp"], 4):
            run(w_reads(vBN, WOS[q], 512, WP[q]))
        if "ost" in between:
            run(store_pairs(pk8, WS_O))
        vTw, = va("idle touch")
        A(f"s_and_b32 {sT0}, {sR}, 17")
        A(f"s_lshr_b32 {sT1}, {sT0}, 4")
        A(f"s_and_b32 {sT0}, {sT0}, 1")
        A(f"s_mul_i32 {sT1}, {sT1}, {896 * 1024}")
        A(f"s_lshl2_add_u32 {sT0}, {sT0}, {sW}")
        A(f"s_lshl_b32 {sT0}, {sT0}, 13")
        A(f"s_add_u32 {sT0}, {sT0}, {sT1}")
        A(f"v_lshl_add_u32 {vTw}, {vL}, 7, {sT0}")
        for q in range(14):
            A(f"s_mov_b32 {sT0}, {(2 * (q % 7) + q // 7) << 16}")
            A(f"buffer_load_dword {vPF}, {vTw}, {srd['w4']}, {sT0} offen", nodef=True)
            if q == 1 and "opub" in between:
                A.raw("s_waitcnt vmcnt(2)")
                flag_set(sFoH, FL_O)
        V.free(vTw)
        A.raw("s_waitcnt lgkmcnt(0)")
        A("s_barrier")
        for q in range(9):
            for it in w4d[q]:
                if it.tok:
                    it.fn()
        opoll.issue()
        opoll.check()
        for it in sum(ol, []):
            if it.tok:
                it.fn()
        h2poll[0].issue()
        h2poll[0].check()
        for it in sum(h2l, []):
            if it.tok:
                it.fn()
        A.raw("s_waitcnt vmcnt(0)")
        A(f"s_branch {l_join}")
        A.unlock()
        idle_ins, A.ins = A.ins, main_ins
        A.vm_issued, A.vm_done, A.lg_issued, A.lg_done, A.pend, A.t, A.mfma_free, A.bg_next = main_state

    steps = []
    for n in range(18):
        q = n - 4
        if n < 4:
            stp = dict(reads=[], mfma=stage_mfma(WP[n], acc, actB[16 * n:16 * n + 16], zero=(False, n == 0)))
        else:
            mf = stage_mfma(WP[n % 4], acc, h2buf(q), acc1_first=(n == 17))
            if n == 17:
                mf = with_ex(mf, W4S[6])
            stp = dict(reads=w_reads(vBP, W4S[q % 9], 1024, WP[n % 4]), mfma=mf)

            def pre(q=q):
                barrier(vm=w4d[q][-1])
                if q >= 1 and q + 8 < 14:
                    A.enqueue(w4d[q + 8])
            stp["pre"] = pre

        def start(n=n):
            A.wait(vm=(ol[n] if n < 4 else h2l[n - 4])[-1])
            if n == 4:
                stamp("wo")
            if n == 16:
                A(f"v_lshlrev_b32 {vT2}, 10, {vM32}")
                A(f"v_lshl_add_u32 {vT2}, {vHalf}, 4, {vT2}")
                A(f"s_lshl_b32 {sT0}, {sMB}, 15")
                A(f"s_lshl1_add_u32 {sT1}, {sJ}, {sKH}")
                A(f"s_lshl_b32 {sT1}, {sT1}, 6")
                A(f"s_add_u32 {sT2}, {sT0}, {sT1}")

        def end(n=n):
            h2q["free"] = min(14, n + 5)
            h2_pump()
            at(f"s{n}")
        stp["start"], stp["end"] = start, end
        steps.append(stp)
    run_steps(steps, 3, depth=3)
    stamp("p4mm")

    ex_finish()
    for i in range(8):
        A(f"v_cvt_pk_bf16_f32 {pk8[i]}, {acc[0][2 * i]}, {acc[0][2 * i + 1]}")
    for c in range(2):
        A(f"v_permlane32_swap_b32 {pk8[4 * c]}, {pk8[4 * c + 2]}")
        A(f"v_permlane32_swap_b32 {pk8[4 * c + 1]}, {pk8[4 * c + 3]}")
    for c in range(2):
        A(f"buffer_store_dwordx4 {pk8[4 * c:4 * c + 4]}, {vT2}, {srd['out']}, {sT2} offen offset:{c * 32} {opt.get('outmode', '')}")
    assert not A.bgq
    if opt.get("stamps"):
        stamp("stored")
        A.wait_all()
        stamp("end")
        A(f"s_lshl2_add_u32 {sT0}, s2, {sW}")
        A(f"s_lshl_b32 {sT0}, {sT0}, 8")
        A(f"s_add_u32 {sT0}, {sT0}, {WS_TS}")
        A(f"v_lshlrev_b32 {vT0}, 2, {vL}")
        A(f"buffer_store_dword {vTS}, {vT0}, {srd['ws']}, {sT0} offen")
    if opt.get("padto"):
        A.raw("L_PAD:")
        A.raw(f"s_memrealtime {s64}")
        A.raw("s_waitcnt lgkmcnt(0)")
        A.raw(f"s_sub_u32 {sT0}, {s64[0]}, {sTS[0]}")
        A.raw(f"s_cmp_lt_u32 {sT0}, {opt['padto']}")
        A.raw("s_cbranch_scc1 L_PAD")
    if opt.get("padclk"):
        A.raw(f"s_mov_b32 {sT0}, {opt['padclk'] // 80}")
        A.raw("L_PAD2:")
        A.raw("s_nop 15")
        A.raw(f"s_sub_u32 {sT0}, {sT0}, 1")
        A.raw(f"s_cmp_lg_u32 {sT0}, 0")
        A.raw("s_cbranch_scc1 L_PAD2")
    A.label("L_END")
    A("s_endpgm")
    if IDLE:
        A.ins += idle_ins
    for t in A.ool:
        A.raw(t)
    assert fired == set(PLACE), set(PLACE) - fired
    A.label("L_CODE_END")
    nops = A.pad_hazards()
    info = dict(nops=nops, autowaits=A.autowaits, n=len([i for i in A.ins if i.op]), vhigh=V.high, ahigh=AG.high, shigh=S.high, est=A.t, stamps=stamps)
    return A, info


HEADER = """; Fused persistent kernel (generated by dev/gen.py).
; Kernarg: A_x, A_wqkv, A_wo, B_x, B_w1, B_w2, B_w3, B_w4, d_out, d_debug, d_ws
; @launch grid=(256,1,1) block=(256,1,1) lds=%d
.amdgcn_target "amdgcn-amd-amdhsa--gfx950"
.text
.globl %s
.p2align 8
.type %s,@function
%s:
"""
FOOTER = """
.section .rodata,"a"
.p2align 6
.amdhsa_kernel %s
  .amdhsa_next_free_vgpr 512
  .amdhsa_next_free_sgpr 102
  .amdhsa_accum_offset 256
  .amdhsa_group_segment_fixed_size 0
  .amdhsa_kernarg_size 88
  .amdhsa_user_sgpr_count 2
  .amdhsa_user_sgpr_kernarg_segment_ptr 1
  .amdhsa_system_sgpr_workgroup_id_x 1
.end_amdhsa_kernel
"""


def emit(path, opt):
    A, info = build(opt)
    if opt.get("align", 1):
        info["align"] = align_pass(A, HEADER % (LDS_BYTES, KNAME, KNAME, KNAME), FOOTER % KNAME)
    with open(path, "w") as f:
        f.write(HEADER % (LDS_BYTES, KNAME, KNAME, KNAME))
        f.write(A.text())
        f.write(FOOTER % KNAME)
    return info


if __name__ == "__main__":
    import json
    opt = {}
    path = sys.argv[1]
    for a in sys.argv[2:]:
        if a.endswith(".json"):
            opt.update(json.load(open(a)))
            continue
        k, _, v = a.partition("=")
        opt[k] = json.loads(v) if v else True
    info = emit(path, opt)
    print({k: v for k, v in info.items() if k != "stamps"})
    if info["stamps"]:
        json.dump(info["stamps"], open(path + ".stamps.json", "w"))
```
